```python
import torch

def _softmax(x, axis=-1):
    return torch.softmax(x, dim=axis)
def _gelu(x):
    return torch.nn.functional.gelu(x, approximate="tanh")
def _silu(x):
    return torch.nn.functional.silu(x)
def _sigmoid(x):
    return torch.sigmoid(x)
def _layernorm(x, axis=-1, eps=1e-5):
    m = x.mean(dim=axis, keepdim=True)
    v = x.var(dim=axis, keepdim=True, unbiased=False)
    return (x - m) / torch.sqrt(v + eps)
def _scatter_add(tgt, idx, src, axis=0):
    return tgt.clone().index_add_(axis, idx, src)
def _segment_sum(src, seg, n):
    out = torch.zeros((n,) + src.shape[1:], dtype=src.dtype)
    return out.index_add_(0, seg, src)
def _pad(x, pw):
    flat = tuple(v for pair in reversed(pw) for v in pair)
    return torch.nn.functional.pad(x, flat)

kernel_name = 'standalone__batchnorm__sampling'

def setup_inputs():

    _w = (lambda a: (lambda t: t.to(torch.bfloat16) if t.is_floating_point() else t)(torch.as_tensor(a)))
    B, S, C = 1024, 32, 512
    K = 3
    return {
        "x": _w((lambda *s: torch.randn(*s, dtype=torch.bfloat16) * 0.05)(B, S, C)),
        "w": _w((lambda *s: torch.randn(*s, dtype=torch.bfloat16) * 0.05)(K, C, C) * (1.0 / (K * C) ** 0.5)),
        "mean": _w((lambda *s: torch.randn(*s, dtype=torch.bfloat16) * 0.05)(C) * 0.1),
        "var": _w(torch.abs((lambda *s: torch.randn(*s, dtype=torch.bfloat16) * 0.05)(C)) + 0.5),
        "g": _w((lambda *s: torch.randn(*s, dtype=torch.bfloat16) * 0.05)(C) + 1.0),
        "b": _w((lambda *s: torch.randn(*s, dtype=torch.bfloat16) * 0.05)(C) * 0.1),
    }

def reference(x, w, mean, var, g, b):
    K = 3
    P = K // 2
    S = x.shape[1]
    xp = _pad(x, ((0, 0), (P, P), (0, 0)))
    y = sum(torch.einsum('bsc,cd->bsd', xp[:, k:k + S, :], w[k]) for k in range(K))
    inv_std = 1.0 / torch.sqrt(var + 1e-5)
    y = (y - mean) * (g * inv_std) + b
    return _silu(y)
```

```python
import sys, argparse

HEADER = """; Kernarg layout for this problem (72 bytes, ptrs only, base s[0:1]):
; @launch grid=(256,1,1) block=(512,1,1) lds=163840
"""

NAME = "standalone__batchnorm__sampling_kernel"

R = [4, 8, 12, 16]
E = [20, 24, 28, 32]
XF = [36, 40, 44, 48]
SC, SH = 52, 56
vXr, vXr2, vXd, vO = 60, 61, 62, 63
vWg, vWw, vWr = 1, 2, 3
TMP = [0, 1, 2, 3]

sX, sW, sO = 8, 12, 16
sWave, sM0, sXoff, sTmp, sP1off, sP1m0, sOoff, sCnt, sC, sTmp2 = 20, 21, 22, 23, 24, 25, 26, 27, 28, 29
WS = 131072
WT = 10240


def vr(b, n=4):
    return f"v[{b}:{b+n-1}]"


def ar(b, n=4):
    return f"a[{b}:{b+n-1}]"


def wreg(kk, t):
    return (kk * 3 + t) * 4


class Em:
    def __init__(self):
        self.lines = []
        self.lds = []
        self.vm = []
        self.vm_sites = {}
        self.vm_override = None

    def op(self, s):
        self.lines.append("    " + s)

    def label(self, s):
        self.lines.append(s + ":")

    def comment(self, s):
        self.lines.append("    ; " + s)

    def ldsop(self, s, tag):
        self.op(s)
        self.lds.append(tag)

    def vmop(self, s, tag):
        self.op(s)
        self.vm.append(tag)

    def wait_lds(self, tag):
        idx = None
        for i, t in enumerate(self.lds):
            if t == tag:
                idx = i
        if idx is None:
            return
        n = len(self.lds) - 1 - idx
        n = min(n, 15)
        self.op(f"s_waitcnt lgkmcnt({n})")
        self.lds = self.lds[len(self.lds) - n:] if n else []

    def wait_vm(self, tag, site=None):
        idx = None
        for i, t in enumerate(self.vm):
            if t == tag:
                idx = i
        if idx is None:
            n = 63
        else:
            n = min(len(self.vm) - 1 - idx, 63)
        if site is not None:
            self.vm_sites[site] = min(self.vm_sites.get(site, 63), n)
            if self.vm_override is not None:
                n = self.vm_override[site]
        if idx is None and site is None:
            return
        self.op(f"s_waitcnt vmcnt({n})")
        if n < len(self.vm):
            self.vm = self.vm[len(self.vm) - n:] if n else []


class Group:
    def __init__(self, s, kk, mfmas):
        self.s, self.kk, self.mfmas = s, kk, mfmas
        self.pre = []
        self.fill = []


def accreg(o, P):
    if o <= P - 3:
        return E[o]
    return R[o & 3]


def epilogue_ops(o, P, soff):
    a = accreg(o, P)
    ops = []
    for r in range(4):
        ops.append(lambda em, r=r: em.op(f"v_fma_f32 v{a+r}, v{a+r}, v{SC+r}, v{SH+r}"))
    for r in range(4):
        ops.append(lambda em, r=r: em.op(f"v_exp_f32 v{TMP[r]}, v{a+r}"))
    for r in range(4):
        ops.append(lambda em, r=r: em.op(f"v_fma_f32 v{TMP[r]}, v{TMP[r]}, s{sC}, s{sC}"))
    for r in range(4):
        ops.append(lambda em, r=r: em.op(f"v_rcp_f32 v{TMP[r]}, v{TMP[r]}"))
    for r in range(4):
        ops.append(lambda em, r=r: em.op(f"v_mul_f32 v{a+r}, v{a+r}, v{TMP[r]}"))
    ops.append(lambda em: em.op(f"v_cvt_pk_bf16_f32 v{a}, v{a}, v{a+1}"))
    ops.append(lambda em: em.op(f"v_cvt_pk_bf16_f32 v{a+1}, v{a+2}, v{a+3}"))

    def st(em):
        s = soff(em)
        em.vmop(f"buffer_store_dwordx2 {vr(a,2)}, v{vO}, s[{sO}:{sO+3}], {s} offen", ("st", o))
    ops.append(st)
    return ops


def emit_groups(em, groups, nxt, PF=3):
    allg = groups + nxt
    for i, g in enumerate(groups):
        for f in g.pre:
            f(em)
        if i + PF < len(allg):
            issue_read(em, allg[i + PF])
        em.wait_lds(("xf", g.s, g.kk))
        fills = list(g.fill)
        nm = len(g.mfmas)
        for j, (acc, w, first) in enumerate(g.mfmas):
            c = "0" if first else vr(acc)
            em.op(f"v_mfma_f32_16x16x32_bf16 {vr(acc)}, {ar(w)}, {vr(XF[g.idx & 3])}, {c}")
            k = (len(fills) + (nm - j) - 1) // (nm - j)
            for f in fills[:k]:
                f(em)
            fills = fills[k:]


def issue_read(em, g):
    slot = g.s & 7
    off = (slot & 3) * 16384 + (g.kk >> 2) * 4096 + (g.kk & 3) * 256
    base = vXr2 if slot >= 4 else vXr
    em.ldsop(f"ds_read_b128 {vr(XF[g.idx & 3])}, v{base} offset:{off}", ("xf", g.s, g.kk))


def x_dma_steady(em, st, soff_sgpr):
    slot = st & 7
    em.op(f"s_add_u32 m0, s{sM0}, {slot*16384}")
    em.op("s_nop 0")
    em.vmop(f"buffer_load_dwordx4 v{vXd}, s[{sX}:{sX+3}], {soff_sgpr} offen lds", ("x", st))
    em.op(f"s_add_u32 m0, s{sM0}, {slot*16384 + 4096 - 256}")
    em.op("s_nop 0")
    em.vmop(f"buffer_load_dwordx4 v{vXd}, s[{sX}:{sX+3}], {soff_sgpr} offen offset:256 lds", ("x", st))


def x_dma_p1(em, c4):
    for i in range(3):
        em.op(f"s_add_u32 m0, s{sP1m0}, {i*16384 + c4*4096}")
        em.op(f"s_add_u32 s{sTmp}, s{sP1off}, {i*1024 + c4*256}")
        em.vmop(f"buffer_load_dwordx4 v{vXd}, s[{sX}:{sX+3}], s{sTmp} offen lds", ("xc", c4))


def w_load(em, kk):
    for t in range(3):
        em.op(f"s_mov_b32 s{sTmp}, {t*524288 + kk*32768}")
        em.vmop(f"buffer_load_dwordx4 {ar(wreg(kk,t))}, v{vWg}, s[{sW}:{sW+3}], s{sTmp} offen", ("w", kk))


def prologue(em, args):
    em.op("s_cmp_ge_u32 s2, 256")
    em.op("s_cbranch_scc1 L_end")
    em.op("s_load_dwordx8 s[32:39], s[0:1], 0")
    em.op("s_load_dwordx4 s[40:43], s[0:1], 32")
    em.op("s_load_dwordx2 s[44:45], s[0:1], 48")
    if args.stamp:
        em.op("s_load_dwordx2 s[46:47], s[0:1], 64")
        em.op("s_memtime s[48:49]")
    em.op("v_lshrrev_b32 v4, 6, v0")
    em.op("v_and_b32 v0, 63, v0")
    em.op(f"v_readfirstlane_b32 s{sWave}, v4")
    em.op("s_and_b32 s3, s2, 7")
    em.op("s_lshr_b32 s4, s2, 3")
    em.op("s_and_b32 s5, s4, 3")
    em.op("s_lshr_b32 s4, s4, 2")
    em.op("s_lshl_b32 s3, s3, 3")
    em.op("s_add_u32 s3, s3, s4")
    em.op("s_lshl_b32 s3, s3, 19")
    em.op("s_lshl_b32 s5, s5, 8")
    em.op("v_and_b32 v5, 15, v0")
    em.op("v_lshrrev_b32 v6, 4, v0")
    em.op("v_lshrrev_b32 v7, 3, v5")
    em.op("v_mul_u32_u24 v7, 3, v7")
    em.op("v_xor_b32 v7, v6, v7")
    em.op("v_lshlrev_b32 v7, 4, v7")
    em.op("v_lshrrev_b32 v8, 2, v5")
    em.op("v_lshl_add_u32 v7, v8, 10, v7")
    em.op("v_and_b32 v8, 3, v5")
    em.op(f"v_lshl_add_u32 v{vXr}, v8, 6, v7")
    em.op(f"v_add_u32 v{vXr2}, 0x10000, v{vXr}")
    em.op(f"s_and_b32 s6, s{sWave}, 3")
    em.op(f"s_lshr_b32 s7, s{sWave}, 2")
    em.op(f"s_lshl_b32 s30, s6, 10")
    em.op(f"s_lshl_b32 s{sM0}, s7, 13")
    em.op(f"s_add_u32 s{sM0}, s{sM0}, s30")
    em.op(f"s_mul_i32 s{sP1off}, s7, 3072")
    em.op(f"s_mul_i32 s{sP1m0}, s7, 49152")
    em.op(f"s_add_u32 s{sP1m0}, s{sP1m0}, s30")
    em.op(f"s_lshl_b32 s{sXoff}, s7, 9")
    em.op(f"s_mov_b32 s{sC}, 0xbfb8aa3b")
    em.op("s_lshr_b32 s31, s6, 1")
    em.op("s_mul_i32 s31, s31, 3")
    em.op("v_and_b32 v7, 3, v0")
    em.op("v_xor_b32 v7, s31, v7")
    em.op("v_lshlrev_b32 v7, 4, v7")
    em.op("v_lshl_add_u32 v7, v6, 6, v7")
    em.op("v_bfe_u32 v8, v0, 2, 2")
    em.op("v_lshl_add_u32 v7, v8, 15, v7")
    em.op("s_lshl_b32 s31, s6, 17")
    em.op(f"v_add_u32 v{vXd}, s31, v7")
    em.op(f"s_lshl_b32 s31, s{sWave}, 12")
    em.op("v_lshlrev_b32 v7, 4, v5")
    em.op("v_lshl_add_u32 v8, v6, 10, v7")
    em.op(f"v_add_u32 v{vWg}, s31, v8")
    em.op(f"s_mul_i32 s31, s{sWave}, 1280")
    em.op(f"s_bfe_u32 s30, s{sWave}, 0x10001")
    em.op("s_lshl_b32 s30, s30, 7")
    em.op("s_add_u32 s31, s31, s30")
    em.op(f"s_add_u32 s31, s31, {WS}")
    em.op("v_mul_u32_u24 v8, 288, v6")
    em.op("v_add3_u32 v2, v8, v7, s31")
    em.op("v_mul_u32_u24 v8, 2560, v6")
    em.op("v_and_b32 v9, 1, v6")
    em.op("v_lshl_add_u32 v8, v9, 7, v8")
    em.op("v_lshrrev_b32 v9, 2, v5")
    em.op("v_mul_u32_u24 v9, 288, v9")
    em.op("v_add_u32 v8, v8, v9")
    em.op("v_and_b32 v9, 3, v0")
    em.op("v_lshl_add_u32 v8, v9, 3, v8")
    em.op(f"s_lshl_b32 s31, s{sWave}, 5")
    em.op(f"s_add_u32 s30, s31, {WS}")
    em.op(f"v_add_u32 v{vWr}, s30, v8")
    em.op("v_lshlrev_b32 v8, 3, v6")
    em.op("v_lshl_add_u32 v9, v5, 15, v8")
    em.op(f"v_add_u32 v{vO}, s31, v9")
    em.op("s_add_u32 s31, s31, s5")
    em.op("v_add_u32 v10, s31, v8")
    em.op("s_waitcnt lgkmcnt(0)")
    em.op(f"s_add_u32 s{sX}, s32, s3")
    em.op(f"s_addc_u32 s{sX+1}, s33, 0")
    em.op(f"s_mov_b32 s{sX+2}, 524288")
    em.op(f"s_mov_b32 s{sX+3}, 0x00020000")
    em.op(f"s_add_u32 s{sW}, s34, s5")
    em.op(f"s_addc_u32 s{sW+1}, s35, 0")
    em.op(f"s_sub_u32 s{sW+2}, 1572864, s5")
    em.op(f"s_mov_b32 s{sW+3}, 0x00020000")
    em.op("s_add_u32 s3, s3, s5")
    em.op(f"s_add_u32 s{sO}, s44, s3")
    em.op(f"s_addc_u32 s{sO+1}, s45, 0")
    em.op(f"s_sub_u32 s{sO+2}, 524288, s5")
    em.op(f"s_mov_b32 s{sO+3}, 0x00020000")


def bn_loads(em):
    em.vmop("global_load_dwordx2 v[12:13], v10, s[36:37]", "bn")
    em.vmop("global_load_dwordx2 v[14:15], v10, s[38:39]", "bn")
    em.vmop("global_load_dwordx2 v[16:17], v10, s[40:41]", "bn")
    em.vmop("global_load_dwordx2 v[18:19], v10, s[42:43]", "bn")


def bn_compute(em):
    em.wait_vm("bn")
    for k, src in enumerate((12, 14, 16, 18)):
        d = 20 + 4 * k
        em.op(f"v_lshlrev_b32 v{d}, 16, v{src}")
        em.op(f"v_and_b32 v{d+1}, 0xffff0000, v{src}")
        em.op(f"v_lshlrev_b32 v{d+2}, 16, v{src+1}")
        em.op(f"v_and_b32 v{d+3}, 0xffff0000, v{src+1}")

    def rnd(b):
        em.op(f"v_cvt_pk_bf16_f32 v12, v{b}, v{b+1}")
        em.op(f"v_cvt_pk_bf16_f32 v13, v{b+2}, v{b+3}")
        em.op(f"v_lshlrev_b32 v{b}, 16, v12")
        em.op(f"v_and_b32 v{b+1}, 0xffff0000, v12")
        em.op(f"v_lshlrev_b32 v{b+2}, 16, v13")
        em.op(f"v_and_b32 v{b+3}, 0xffff0000, v13")
    for r in range(4):
        em.op(f"v_add_f32 v{24+r}, 0x3727c5ac, v{24+r}")
    rnd(24)
    for r in range(4):
        em.op(f"v_sqrt_f32 v{24+r}, v{24+r}")
    em.op("s_nop 0")
    rnd(24)
    for r in range(4):
        em.op(f"v_rcp_f32 v{24+r}, v{24+r}")
    em.op("s_nop 0")
    rnd(24)
    for r in range(4):
        em.op(f"v_mul_f32 v{24+r}, v{24+r}, v{28+r}")
    rnd(24)
    for r in range(4):
        em.op(f"v_fma_f32 v{32+r}, -v{20+r}, v{24+r}, v{32+r}")
    for r in range(4):
        em.op(f"v_mul_f32 v{SC+r}, s{sC}, v{24+r}")
        em.op(f"v_mul_f32 v{SH+r}, s{sC}, v{32+r}")


def w_stage_write(kk):
    def f(em):
        em.wait_vm(("w", kk))
        for t in range(3):
            em.ldsop(f"ds_write_b128 v{vWw}, {ar(wreg(kk,t))} offset:{t*WT}", ("ww", kk))
    return f


def w_stage_read(kk):
    def f(em):
        em.wait_lds(("ww", kk))
        em.op("s_barrier")
        for t in range(3):
            for h in range(2):
                em.ldsop(f"ds_read_b64_tr_b16 {ar(wreg(kk,t)+2*h,2)}, v{vWr} offset:{t*WT + h*1280}", ("wr", kk))
    return f


def w_stage_done(kk, barrier=True):
    def f(em):
        em.wait_lds(("wr", kk))
        if barrier:
            em.op("s_barrier")
    return f


def build(args, vm_override=None, linear=False):
    P, D = args.P, args.D
    em = Em()
    em.vm_override = vm_override
    prologue(em, args)

    def load_unit(em, kk):
        if kk > 16:
            return
        if kk == 16:
            em.op(f"s_add_u32 s{sTmp2}, s{sXoff}, {7*1024}")
            x_dma_steady(em, 7, f"s{sTmp2}")
            return
        if kk % 4 == 0:
            x_dma_p1(em, kk // 4)
        if kk == 15:
            em.op(f"s_add_u32 s{sTmp2}, s{sXoff}, {6*1024}")
            x_dma_steady(em, 6, f"s{sTmp2}")
        w_load(em, kk)

    bn_loads(em)
    for kk in range(D):
        load_unit(em, kk)
    bn_compute(em)

    groups = []
    started = set()

    def mk(s, kk):
        m = []
        for t in range(3):
            o = s + 1 - t
            if o < 0 or o > 31:
                continue
            first = o not in started
            started.add(o)
            m.append((accreg(o, P), wreg(kk, t), first))
        g = Group(s, kk, m)
        g.idx = len(groups)
        groups.append(g)
        return g

    p1 = [[mk(p, kk) for p in range(P)] for kk in range(16)]
    pos = {s: [mk(s, kk) for kk in range(16)] for s in range(P, 32)}

    for kk in range(16):
        gs = p1[kk]
        if kk < 15:
            gs[args.p1w].pre.append(w_stage_write(kk + 1))
            gs[args.p1r].pre.append(w_stage_read(kk + 1))
            gs[P - 1].fill.append(w_stage_done(kk + 1, barrier=(kk + 1 < 15)))
        gs[0].fill.append(lambda em, kk=kk: load_unit(em, kk + D))

    w_stage_write(0)(em)
    w_stage_read(0)(em)
    for g in groups[:3]:
        issue_read(em, g)
    w_stage_done(0)(em)

    drain = {s: [] for s in range(P, 32)}
    for s in range(P, 32):
        drain[s].append(s - 2)
    extras = list(range(0, P - 2))
    peeled = list(range(P, 8))
    for i, o in enumerate(extras):
        drain[peeled[i % len(peeled)]].append(o)
    dma = {s: [s + 7] for s in range(8, 32)}
    todo = list(range(8, 15))
    for i, s in enumerate(peeled):
        n = (len(todo) + (len(peeled) - i) - 1) // (len(peeled) - i)
        dma[s], todo = todo[:n], todo[n:]

    def setup_position(s):
        gs = pos[s]
        inloop = s >= 8
        ops = []
        for o in drain[s]:
            if inloop:
                def soff(em):
                    em.op(f"s_add_u32 s{sOoff}, s{sOoff}, 1024")
                    return f"s{sOoff}"
            else:
                def soff(em, o=o):
                    em.op(f"s_mov_b32 s{sTmp}, {o*1024}")
                    return f"s{sTmp}"
            ops += epilogue_ops(o, P, soff)
        lo, hi = 2, 15
        n = len(ops)
        for i, f in enumerate(ops):
            gi = lo + (i * (hi - lo)) // n
            gs[gi].fill.append(f)

        def sync(em, s=s):
            if s + 1 <= 31:
                em.wait_vm(("x", s + 1), site=(s & 7) if inloop else None)
            elif inloop:
                em.wait_vm(("x", s + 1), site=(s & 7))
            em.op("s_barrier")
            if inloop:
                em.op(f"s_add_u32 s{sXoff}, s{sXoff}, 1024")
                em.op(f"s_cmp_lt_u32 s{sXoff}, 32768")
                em.op(f"s_cselect_b32 s{sTmp2}, s{sXoff}, 0x100000")
                x_dma_steady(em, s + 7, f"s{sTmp2}")
            else:
                for st in dma[s]:
                    em.op(f"s_add_u32 s{sTmp2}, s{sXoff}, {st*1024}")
                    x_dma_steady(em, st, f"s{sTmp2}")
        if s < 31:
            gs[args.syncg].pre.append(sync)

    for s in range(P, 32):
        setup_position(s)

    head = [g for kk in range(16) for g in p1[kk]]
    emit_groups(em, head, pos[P])
    if args.stamp:
        em.op("s_memtime s[50:51]")
    for s in range(P, 8):
        emit_groups(em, pos[s], pos[s + 1])
    em.op(f"s_add_u32 s{sXoff}, s{sXoff}, {14*1024}")
    em.op(f"s_mov_b32 s{sOoff}, {5*1024}")
    em.op(f"s_mov_b32 s{sCnt}, 0")

    def tail(em):
        emit_groups(em, pos[31], [])
        ops30 = epilogue_ops(30, P, lambda em: (em.op(f"s_mov_b32 s{sTmp}, {30*1024}"), f"s{sTmp}")[1])
        ops31 = epilogue_ops(31, P, lambda em: (em.op(f"s_mov_b32 s{sTmp}, {31*1024}"), f"s{sTmp}")[1])
        em.op("s_nop 7")
        for f in ops30:
            f(em)
        for f in ops31:
            f(em)

    if linear:
        for s in range(8, 31):
            emit_groups(em, pos[s], pos[s + 1])
        tail(em)
    else:
        em.label("L_loop")
        lds_entry = list(em.lds)
        for s in range(8, 15):
            emit_groups(em, pos[s], pos[s + 1])
        em.op(f"s_cmp_eq_u32 s{sCnt}, 2")
        em.op("s_cbranch_scc1 L_tail")
        saved = (list(em.lds), list(em.vm))
        emit_groups(em, pos[15], pos[16])
        em.op(f"s_add_u32 s{sCnt}, s{sCnt}, 1")
        em.op("s_branch L_loop")
        assert [(t[0], t[2]) for t in em.lds] == [(t[0], t[2]) for t in lds_entry], (em.lds, lds_entry)
        em.label("L_tail")
        em.lds = [(t[0], 31, t[2]) for t in saved[0]]
        em.vm = saved[1]
        tail(em)
    if args.stamp:
        em.op("s_memtime s[52:53]")
        em.op("s_waitcnt vmcnt(0) lgkmcnt(0)")
        em.op("s_memtime s[54:55]")
        em.op("s_waitcnt lgkmcnt(0)")
        em.op("s_lshl_b32 s3, s2, 3")
        em.op(f"s_add_u32 s3, s3, s{sWave}")
        em.op("s_lshl_b32 s3, s3, 5")
        em.op("v_mov_b32 v0, s3")
        em.op("v_mov_b32 v4, s48")
        em.op("v_mov_b32 v5, s49")
        em.op("v_mov_b32 v6, s50")
        em.op("v_mov_b32 v7, s51")
        em.op("v_mov_b32 v8, s52")
        em.op("v_mov_b32 v9, s53")
        em.op("v_mov_b32 v10, s54")
        em.op("v_mov_b32 v11, s55")
        em.op("global_store_dwordx4 v0, v[4:7], s[46:47]")
        em.op("global_store_dwordx4 v0, v[8:11], s[46:47] offset:16")
    em.label("L_end")
    em.op("s_endpgm")
    return em


def main():
    ap = argparse.ArgumentParser()
    ap.add_argument("-o", default="standalone__batchnorm__sampling.s")
    ap.add_argument("--P", type=int, default=6)
    ap.add_argument("--D", type=int, default=4)
    ap.add_argument("--p1w", type=int, default=1)
    ap.add_argument("--p1r", type=int, default=2)
    ap.add_argument("--syncg", type=int, default=4)
    ap.add_argument("--stamp", type=int, default=0)
    args = ap.parse_args()
    tr = build(args, linear=True)
    sites = tr.vm_sites
    em = build(args, vm_override=sites)
    out = HEADER
    out += '.amdgcn_target "amdgcn-amd-amdhsa--gfx950"\n.text\n'
    out += f".globl {NAME}\n.p2align 8\n.type {NAME},@function\n{NAME}:\n"
    out += "\n".join(em.lines) + "\n"
    out += f""".section .rodata,"a"
.p2align 6
.amdhsa_kernel {NAME}
  .amdhsa_next_free_vgpr 256
  .amdhsa_next_free_sgpr 64
  .amdhsa_accum_offset 64
  .amdhsa_group_segment_fixed_size 0
  .amdhsa_kernarg_size 72
  .amdhsa_user_sgpr_count 2
  .amdhsa_user_sgpr_kernarg_segment_ptr 1
  .amdhsa_system_sgpr_workgroup_id_x 1
.end_amdhsa_kernel
"""
    open(args.o, "w").write(out)
    print("sites", sites, "lines", len(em.lines), file=sys.stderr)


if __name__ == "__main__":
    main()
```

```python
import sys, argparse

HEADER = """; Kernarg layout for this problem (72 bytes, ptrs only, base s[0:1]):
; @launch grid=(256,1,1) block=(256,1,1) lds=163840
"""

NAME = "standalone__batchnorm__sampling_kernel"

R = [8, 16, 24, 32]
E = [40, 48, 56, 64]
XF = [72, 76, 80, 84]
SC, SH = 96, 104
TMP = list(range(112, 120))
vXr, vXr2, vO, vWg = 120, 121, 126, 127
vXd = [122, 123, 124, 125]
vWw, vWr = 1, 2

sX, sW, sO = 8, 12, 16
sWave, sM0, sXoff, sTmp, sOoff, sCnt, sC, sTmp2 = 20, 21, 22, 23, 26, 27, 28, 29
sWc = [24, 25, 30, 31]
WS = 131072
WT = 10240


def vr(b, n=4):
    return f"v[{b}:{b+n-1}]"


def wreg(kk, t, db, lo=0, n=4):
    f = (kk * 3 + t) * 2 + db
    if f < 64:
        return f"a[{4*f+lo}:{4*f+lo+n-1}]"
    b = 128 + 4 * (f - 64) + lo
    return f"v[{b}:{b+n-1}]"


class Em:
    def __init__(self):
        self.lines = []
        self.lds = []
        self.vm = []
        self.vm_sites = {}
        self.vm_override = None
        self.dumps = []

    def op(self, s):
        self.lines.append("    " + s)

    def label(self, s):
        self.lines.append(s + ":")

    def ldsop(self, s, tag):
        if len(self.lds) >= 15:
            self.op("s_waitcnt lgkmcnt(14)")
            self.lds = self.lds[len(self.lds) - 14:]
        self.op(s)
        self.lds.append(tag)

    def vmop(self, s, tag):
        self.op(s)
        self.vm.append(tag)

    def wait_lds(self, tag):
        idx = None
        for i, t in enumerate(self.lds):
            if t == tag:
                idx = i
        if idx is None:
            return False
        n = min(len(self.lds) - 1 - idx, 15)
        self.op(f"s_waitcnt lgkmcnt({n})")
        self.lds = self.lds[len(self.lds) - n:] if n else []
        return True

    def wait_vm(self, tag, site=None):
        idx = None
        for i, t in enumerate(self.vm):
            if t == tag:
                idx = i
        n = 63 if idx is None else min(len(self.vm) - 1 - idx, 63)
        if site is not None:
            self.vm_sites[site] = min(self.vm_sites.get(site, 63), n)
            if self.vm_override is not None:
                n = self.vm_override[site]
        if idx is None and site is None:
            return False
        self.op(f"s_waitcnt vmcnt({n})")
        if n < len(self.vm):
            self.vm = self.vm[len(self.vm) - n:] if n else []
        return True


class F:
    def __init__(self, fn, kind="o", at=0, gapsep=0):
        self.fn, self.kind, self.at, self.gapsep = fn, kind, at, gapsep


class Group:
    def __init__(self, s, kk, mfmas):
        self.s, self.kk, self.mfmas = s, kk, mfmas


class Segment:
    def __init__(self, groups):
        self.groups = groups
        self.streams = []


def accreg(o, P):
    return E[o] if o <= P - 3 else R[o & 3]


def epilogue_ops(o, P, soff, at=0):
    a = accreg(o, P)
    L = []
    for r in range(8):
        L.append(F(lambda em, r=r: em.op(f"v_fma_f32 v{a+r}, v{a+r}, v{SC+r}, v{SH+r}"), "v"))
    for r in range(8):
        L.append(F(lambda em, r=r: em.op(f"v_exp_f32 v{TMP[r]}, v{a+r}"), "t"))
    for r in range(8):
        L.append(F(lambda em, r=r: em.op(f"v_fma_f32 v{TMP[r]}, v{TMP[r]}, s{sC}, s{sC}"), "v"))
    for r in range(8):
        L.append(F(lambda em, r=r: em.op(f"v_rcp_f32 v{TMP[r]}, v{TMP[r]}"), "t"))
    for r in range(8):
        L.append(F(lambda em, r=r: em.op(f"v_mul_f32 v{a+r}, v{a+r}, v{TMP[r]}"), "v"))
    for r in range(4):
        L.append(F(lambda em, r=r: em.op(f"v_cvt_pk_bf16_f32 v{a+r}, v{a+2*r}, v{a+2*r+1}"), "v"))
    L.append(F(lambda em: em.op(f"v_permlane16_swap_b32 v{a}, v{a+2}"), "v", gapsep=2))
    L.append(F(lambda em: em.op(f"v_permlane16_swap_b32 v{a+1}, v{a+3}"), "v"))
    L.append(F(lambda em: soff[0](em), "o"))
    L.append(F(lambda em: em.vmop(f"buffer_store_dwordx4 {vr(a)}, v{vO}, s[{sO}:{sO+3}], {soff[1]} offen", ("st", o)), "o", gapsep=1))
    L[0].at = at
    return L


def issue_read(em, g):
    slot = g.s & 7
    off = (slot & 3) * 16384 + (g.kk >> 2) * 4096 + (g.kk & 3) * 256
    base = vXr2 if slot >= 4 else vXr
    em.ldsop(f"ds_read_b128 {vr(XF[g.idx & 3])}, v{base} offset:{off}", ("xf", g.s, g.kk))


def emit_segment(em, seg, nxt, PF=3, cap=2):
    allg = seg.groups + nxt
    streams = [list(s) for s in seg.streams]
    lastgap = [-99] * len(streams)
    gap = 0
    ngaps = sum(len(g.mfmas) for g in seg.groups)
    for i, g in enumerate(seg.groups):
        if i + PF < len(allg):
            issue_read(em, allg[i + PF])
        em.wait_lds(("xf", g.s, g.kk))
        nm = len(g.mfmas)
        for j, (acc, w, first) in enumerate(g.mfmas):
            c = "0" if first else vr(acc)
            em.op(f"v_mfma_f32_16x16x32_bf16 {vr(acc)}, {w}, {vr(XF[g.idx & 3])}, {c}")
            last_of_group = j == nm - 1
            n_left = max(cap - 2, 0) if last_of_group else cap
            v_left = 8
            final = gap == ngaps - 1
            if final:
                n_left, v_left = 10**6, 10**6
                nd = sum(len(st) for st in streams)
                if nd:
                    em.dumps.append((g.s, g.kk, nd))
            progress = True
            while progress and n_left > 0:
                progress = False
                for si, st in enumerate(streams):
                    if not st or n_left <= 0:
                        continue
                    f = st[0]
                    if not final:
                        if f.at > gap or gap < lastgap[si] + f.gapsep:
                            continue
                        cost = {"v": 4, "t": 8, "o": 0}[f.kind]
                        if cost > v_left:
                            continue
                        v_left -= cost
                    else:
                        if f.gapsep:
                            em.op(f"s_nop {max(f.gapsep - 1, 0)}")
                        if f.kind == "v" and getattr(em, "prev_t", False):
                            em.op("s_nop 0")
                    em.prev_t = f.kind == "t"
                    f.fn(em)
                    st.pop(0)
                    lastgap[si] = gap
                    n_left -= 1
                    progress = True
            gap += 1
    for st in streams:
        assert not st


def dma_items(st, soff, at=0, tag=None, slot=None, chunks=(0, 1, 2, 3)):
    slot = (st & 7) if slot is None else slot
    L = []
    for c4 in chunks:
        L.append(F(lambda em, c4=c4: em.op(f"s_add_u32 m0, s{sM0}, {slot*16384 + c4*4096}"), "o", gapsep=1))
        L.append(F(lambda em, c4=c4: em.vmop(f"buffer_load_dwordx4 v{vXd[c4]}, s[{sX}:{sX+3}], {soff} offen lds", tag or ("x", st)), "o", gapsep=1))
    L[0].at = at
    L[0].gapsep = 0
    return L


def load_unit_items(kk):
    L = []
    if kk > 16:
        return L

    def stage(st):
        L.append(F(lambda em: em.op(f"s_mov_b32 s{sTmp2}, {st*1024}"), "o"))
        L.extend(dma_items(st, f"s{sTmp2}"))
    if kk == 16:
        stage(7)
        return L
    c4 = None
    if kk == 0:
        c4 = 0
    elif kk % 4 == 3 and kk < 15:
        c4 = kk // 4 + 1
    if c4 is not None:
        for p in range(6):
            L.append(F(lambda em, p=p: em.op(f"s_add_u32 m0, s{sM0}, {p*16384 + c4*4096}"), "o", gapsep=1))
            L.append(F(lambda em, p=p: em.op(f"s_mov_b32 s{sTmp2}, {p*1024}"), "o"))
            L.append(F(lambda em, p=p: em.vmop(f"buffer_load_dwordx4 v{vXd[c4]}, s[{sX}:{sX+3}], s{sTmp2} offen lds", ("xc", c4)), "o"))
    if kk == 15:
        stage(6)
    for t in range(3):
        for h in range(2):
            L.append(F(lambda em, t=t, h=h: em.op(f"s_add_u32 s{sTmp}, s{sWc[kk>>2]}, {t*524288 + (kk&3)*32768 + h*16384}"), "o"))
            L.append(F(lambda em, t=t, h=h: em.vmop(f"buffer_load_dwordx4 {wreg(kk,t,h)}, v{vWg}, s[{sW}:{sW+3}], s{sTmp} offen", ("w", kk)), "o"))
    return L


def emit_now(em, items):
    for f in items:
        if f.gapsep:
            em.op("s_nop 0")
        f.fn(em)


def prologue(em, args):
    em.op("s_cmp_ge_u32 s2, 256")
    em.op("s_cbranch_scc1 L_end")
    em.op("s_load_dwordx8 s[32:39], s[0:1], 0")
    em.op("s_load_dwordx4 s[40:43], s[0:1], 32")
    em.op("s_load_dwordx2 s[44:45], s[0:1], 48")
    if args.stamp:
        em.op("s_load_dwordx2 s[46:47], s[0:1], 64")
        em.op("s_memtime s[48:49]")
        em.op("s_memrealtime s[56:57]")
    em.op("v_lshrrev_b32 v4, 6, v0")
    em.op("v_and_b32 v0, 63, v0")
    em.op(f"v_readfirstlane_b32 s{sWave}, v4")
    em.op("s_and_b32 s3, s2, 7")
    em.op("s_lshr_b32 s4, s2, 3")
    em.op("s_and_b32 s5, s4, 3")
    em.op("s_lshr_b32 s4, s4, 2")
    if args.rot:
        em.op("s_add_u32 s6, s4, s3")
        em.op("s_and_b32 s6, s6, 3")
    else:
        em.op("s_mov_b32 s6, 0")
    em.op("s_lshl_b32 s3, s3, 3")
    em.op("s_add_u32 s3, s3, s4")
    em.op("s_lshl_b32 s3, s3, 19")
    em.op("s_lshl_b32 s5, s5, 8")
    for c4 in range(4):
        em.op(f"s_add_u32 s7, s6, {c4}")
        em.op("s_and_b32 s7, s7, 3")
        em.op(f"s_lshl_b32 s{sWc[c4]}, s7, 17")
    em.op("v_and_b32 v5, 15, v0")
    em.op("v_lshrrev_b32 v6, 4, v0")
    em.op(f"s_lshl_b32 s7, s{sWave}, 12")
    em.op("v_lshlrev_b32 v7, 4, v5")
    em.op("v_lshl_add_u32 v8, v6, 10, v7")
    em.op(f"v_add_u32 v{vWg}, s7, v8")
    em.op(f"s_lshr_b32 s7, s{sWave}, 1")
    em.op("s_mul_i32 s7, s7, 3")
    em.op("v_and_b32 v9, 3, v0")
    em.op("v_xor_b32 v9, s7, v9")
    em.op("v_lshlrev_b32 v9, 4, v9")
    em.op("v_lshl_add_u32 v9, v6, 6, v9")
    em.op("v_bfe_u32 v8, v0, 2, 2")
    em.op("v_lshl_add_u32 v9, v8, 15, v9")
    em.op(f"s_lshl_b32 s7, s{sWave}, 17")
    em.op("v_add_u32 v9, s7, v9")
    for c4 in range(4):
        em.op(f"s_lshr_b32 s7, s{sWc[c4]}, 9")
        em.op(f"v_add_u32 v{vXd[c4]}, s7, v9")
    em.op(f"s_lshl_b32 s{sM0}, s{sWave}, 10")
    em.op(f"s_mov_b32 s{sC}, 0xbfb8aa3b")
    em.op(f"s_lshl_b32 s7, s{sWave}, 6")
    em.op("s_add_u32 s4, s7, s5")
    em.op("v_lshlrev_b32 v8, 3, v6")
    em.op("v_add_u32 v10, s4, v8")
    em.op("s_waitcnt lgkmcnt(0)")
    em.op(f"s_add_u32 s{sX}, s32, s3")
    em.op(f"s_addc_u32 s{sX+1}, s33, 0")
    em.op(f"s_mov_b32 s{sX+2}, 524288")
    em.op(f"s_mov_b32 s{sX+3}, 0x00020000")
    em.op(f"s_add_u32 s{sW}, s34, s5")
    em.op(f"s_addc_u32 s{sW+1}, s35, 0")
    em.op(f"s_sub_u32 s{sW+2}, 1572864, s5")
    em.op(f"s_mov_b32 s{sW+3}, 0x00020000")
    em.op("s_add_u32 s3, s3, s5")
    em.op(f"s_add_u32 s{sO}, s44, s3")
    em.op(f"s_addc_u32 s{sO+1}, s45, 0")
    em.op(f"s_sub_u32 s{sO+2}, 524288, s5")
    em.op(f"s_mov_b32 s{sO+3}, 0x00020000")


def prologue2(em):
    em.op("v_lshrrev_b32 v9, 3, v5")
    em.op("v_mul_u32_u24 v9, 3, v9")
    em.op("v_xor_b32 v9, v6, v9")
    em.op("v_lshlrev_b32 v9, 4, v9")
    em.op("v_lshrrev_b32 v8, 2, v5")
    em.op("v_lshl_add_u32 v9, v8, 10, v9")
    em.op("v_and_b32 v8, 3, v5")
    em.op(f"v_lshl_add_u32 v{vXr}, v8, 6, v9")
    em.op(f"v_add_u32 v{vXr2}, 0x10000, v{vXr}")
    em.op(f"s_mul_i32 s4, s{sWave}, 1280")
    em.op(f"s_bfe_u32 s3, s{sWave}, 0x10001")
    em.op("s_lshl_b32 s3, s3, 7")
    em.op("s_add_u32 s4, s4, s3")
    em.op(f"s_add_u32 s4, s4, {WS}")
    em.op("v_mul_u32_u24 v8, 288, v6")
    em.op(f"v_add3_u32 v{vWw}, v8, v7, s4")
    em.op("v_mul_u32_u24 v8, 2560, v6")
    em.op("v_and_b32 v9, 1, v6")
    em.op("v_lshl_add_u32 v8, v9, 7, v8")
    em.op("v_lshrrev_b32 v9, 2, v5")
    em.op("v_mul_u32_u24 v9, 288, v9")
    em.op("v_add_u32 v8, v8, v9")
    em.op("v_and_b32 v9, 3, v0")
    em.op("v_lshl_add_u32 v8, v9, 3, v8")
    em.op(f"s_add_u32 s4, s7, {WS}")
    em.op(f"v_add_u32 v{vWr}, s4, v8")
    em.op("v_and_b32 v8, 1, v6")
    em.op("v_lshlrev_b32 v8, 5, v8")
    em.op("v_lshrrev_b32 v9, 1, v6")
    em.op("v_lshl_add_u32 v8, v9, 4, v8")
    em.op("v_lshl_add_u32 v8, v5, 15, v8")
    em.op(f"v_add_u32 v{vO}, s7, v8")


def bn_loads(em):
    for k, sp in enumerate((36, 38, 40, 42)):
        em.vmop(f"global_load_dwordx2 v[{12+4*k}:{13+4*k}], v10, s[{sp}:{sp+1}]", "bn")
        em.vmop(f"global_load_dwordx2 v[{14+4*k}:{15+4*k}], v10, s[{sp}:{sp+1}] offset:32", "bn")


def bn_compute(em):
    em.wait_vm("bn")
    for k in range(4):
        for i in range(4):
            src = 12 + 4 * k + i
            d = 32 + 8 * k + 2 * i
            em.op(f"v_lshlrev_b32 v{d}, 16, v{src}")
            em.op(f"v_and_b32 v{d+1}, 0xffff0000, v{src}")

    def rnd(b):
        for i in range(4):
            em.op(f"v_cvt_pk_bf16_f32 v{12+i}, v{b+2*i}, v{b+2*i+1}")
        for i in range(4):
            em.op(f"v_lshlrev_b32 v{b+2*i}, 16, v{12+i}")
            em.op(f"v_and_b32 v{b+2*i+1}, 0xffff0000, v{12+i}")
    for r in range(8):
        em.op(f"v_add_f32 v{40+r}, 0x3727c5ac, v{40+r}")
    rnd(40)
    for r in range(8):
        em.op(f"v_sqrt_f32 v{40+r}, v{40+r}")
    em.op("s_nop 0")
    rnd(40)
    for r in range(8):
        em.op(f"v_rcp_f32 v{40+r}, v{40+r}")
    em.op("s_nop 0")
    rnd(40)
    for r in range(8):
        em.op(f"v_mul_f32 v{40+r}, v{40+r}, v{48+r}")
    rnd(40)
    for r in range(8):
        em.op(f"v_fma_f32 v{56+r}, -v{32+r}, v{40+r}, v{56+r}")
    for r in range(8):
        em.op(f"v_mul_f32 v{SC+r}, s{sC}, v{40+r}")
        em.op(f"v_mul_f32 v{SH+r}, s{sC}, v{56+r}")


def wstage_items(kk, a_w, a_b1, a_b2, barrier2=True):
    L = [F(lambda em: em.wait_vm(("w", kk)), "o", at=a_w)]
    for t in range(3):
        for h in range(2):
            L.append(F(lambda em, t=t, h=h: em.ldsop(f"ds_write_b128 v{vWw}, {wreg(kk,t,h)} offset:{t*WT + h*5120}", ("ww", kk)), "o", gapsep=1))
    L[1].gapsep = 0
    L.append(F(lambda em: em.wait_lds(("ww", kk)), "o", at=a_b1))
    L.append(F(lambda em: em.op("s_barrier"), "o"))
    for t in range(3):
        for db in range(2):
            for h in range(2):
                L.append(F(lambda em, t=t, db=db, h=h: em.ldsop(
                    f"ds_read_b64_tr_b16 {wreg(kk,t,db,2*h,2)}, v{vWr} offset:{t*WT + h*1280 + db*32}", ("wr", kk)), "o"))
    L.append(F(lambda em: em.wait_lds(("wr", kk)), "o", at=a_b2))
    if barrier2:
        L.append(F(lambda em: em.op("s_barrier"), "o"))
    return L


def build(args, vm_override=None, linear=False):
    P, D = args.P, args.D
    em = Em()
    em.vm_override = vm_override
    prologue(em, args)
    emit_now(em, load_unit_items(0))
    bn_loads(em)
    for kk in range(1, D):
        emit_now(em, load_unit_items(kk))
    prologue2(em)
    bn_compute(em)

    groups = []
    started = set()

    def mk(s, kk):
        m = []
        for t in range(3):
            o = s + 1 - t
            if o < 0 or o > 31:
                continue
            first = o not in started
            started.add(o)
            for db in range(2):
                m.append((accreg(o, P) + 4 * db, wreg(kk, t, db), first))
        g = Group(s, kk, m)
        g.idx = len(groups)
        groups.append(g)
        return g

    p1 = [Segment([mk(p, kk) for p in range(P)]) for kk in range(16)]
    pos = {s: Segment([mk(s, kk) for kk in range(16)]) for s in range(P, 32)}

    for kk in range(16):
        sg = p1[kk]
        if kk < 15:
            sg.streams.append(wstage_items(kk + 1, args.a_w, args.a_b1, args.a_b2, barrier2=(kk + 1 < 15)))
        sg.streams.append(load_unit_items(kk + D))

    it = wstage_items(0, 0, 0, 0)
    for f in it[:-2]:
        f.fn(em)
    for g in groups[:3]:
        issue_read(em, g)
    for f in it[-2:]:
        f.fn(em)
    if args.stamp:
        em.op("s_memtime s[50:51]")
        em.op("s_memrealtime s[58:59]")

    drain = {s: [s - 2] for s in range(P, 32)}
    extras = list(range(0, P - 2))
    peeled = list(range(P, 8))
    for i, o in enumerate(extras):
        drain[peeled[i % len(peeled)]].append(o)
    dma = {s: [s + 7] for s in range(8, 32)}
    todo = list(range(8, 15))
    for i, s in enumerate(peeled):
        n = (len(todo) + (len(peeled) - i) - 1) // (len(peeled) - i)
        dma[s], todo = todo[:n], todo[n:]

    for s in range(P, 32):
        sg = pos[s]
        inloop = s >= 8
        ep = []
        for o in drain[s]:
            if inloop:
                soff = (lambda em: em.op(f"s_add_u32 s{sOoff}, s{sOoff}, 1024"), f"s{sOoff}")
            else:
                soff = (lambda em, o=o: em.op(f"s_mov_b32 s{sTmp}, {o*1024}"), f"s{sTmp}")
            ep += epilogue_ops(o, P, soff, at=args.a_ep)
        sy = []
        if s < 31:
            sy.append(F(lambda em, s=s, inloop=inloop: em.wait_vm(("x", s + 1), site=(s & 7) if inloop else None), "o", at=args.a_sync))
            sy.append(F(lambda em: em.op("s_barrier"), "o"))
            if inloop:
                sy.append(F(lambda em: em.op(f"s_add_u32 s{sXoff}, s{sXoff}, 1024"), "o"))

                def sel(em):
                    em.op(f"s_cmp_lt_u32 s{sXoff}, 32768")
                    em.op(f"s_cselect_b32 s{sTmp2}, s{sXoff}, 0x100000")
                sy.append(F(sel, "o"))
                sy += dma_items(s + 7, f"s{sTmp2}")
            else:
                for st in dma[s]:
                    sy.append(F(lambda em, st=st: em.op(f"s_mov_b32 s{sTmp2}, {st*1024}"), "o"))
                    sy += dma_items(st, f"s{sTmp2}")
        sg.streams = [sy, ep]

    for kk in range(16):
        nxt = p1[kk + 1].groups if kk < 15 else pos[P].groups
        emit_segment(em, p1[kk], nxt, cap=args.cap1)
    for s in range(P, 8):
        emit_segment(em, pos[s], pos[s + 1].groups, cap=3)
    if args.stamp:
        em.op("s_memtime s[52:53]")
        em.op("s_memrealtime s[60:61]")
    em.op(f"s_mov_b32 s{sXoff}, {14*1024}")
    em.op(f"s_mov_b32 s{sOoff}, {5*1024}")
    em.op(f"s_mov_b32 s{sCnt}, 0")

    def tail(em):
        emit_segment(em, pos[31], [], cap=args.cap)
        em.op("s_nop 7")
        for o in (30, 31):
            soff = (lambda em, o=o: em.op(f"s_mov_b32 s{sTmp}, {o*1024}"), f"s{sTmp}")
            for f in epilogue_ops(o, P, soff):
                if f.gapsep:
                    em.op("s_nop 1")
                f.fn(em)

    if linear:
        for s in range(8, 31):
            emit_segment(em, pos[s], pos[s + 1].groups, cap=args.cap)
        tail(em)
    else:
        em.label("L_loop")
        lds_entry = list(em.lds)
        for s in range(8, 15):
            emit_segment(em, pos[s], pos[s + 1].groups, cap=args.cap)
        em.op(f"s_cmp_eq_u32 s{sCnt}, 2")
        em.op("s_cbranch_scc1 L_tail")
        saved = (list(em.lds), list(em.vm))
        emit_segment(em, pos[15], pos[16].groups, cap=args.cap)
        em.op(f"s_add_u32 s{sCnt}, s{sCnt}, 1")
        em.op("s_branch L_loop")
        assert [(t[0], t[2]) for t in em.lds] == [(t[0], t[2]) for t in lds_entry], (em.lds, lds_entry)
        em.label("L_tail")
        em.lds = [(t[0], 31, t[2]) for t in saved[0]]
        em.vm = saved[1]
        tail(em)
    if args.stamp:
        em.op("s_waitcnt vmcnt(0) lgkmcnt(0)")
        em.op("s_memtime s[54:55]")
        em.op("s_memrealtime s[62:63]")
        em.op("s_waitcnt lgkmcnt(0)")
        em.op("s_lshl_b32 s3, s2, 3")
        em.op(f"s_add_u32 s3, s3, s{sWave}")
        em.op("s_lshl_b32 s3, s3, 6")
        em.op("v_mov_b32 v0, s3")
        for i in range(16):
            em.op(f"v_mov_b32 v{4+i}, s{48+i}")
        for i in range(4):
            em.op(f"global_store_dwordx4 v0, v[{4+4*i}:{7+4*i}], s[46:47] offset:{16*i}")
    em.label("L_end")
    em.op("s_endpgm")
    return em


def main():
    ap = argparse.ArgumentParser()
    ap.add_argument("-o", default="standalone__batchnorm__sampling.s")
    ap.add_argument("--P", type=int, default=6)
    ap.add_argument("--D", type=int, default=4)
    ap.add_argument("--a_w", type=int, default=4)
    ap.add_argument("--a_b1", type=int, default=13)
    ap.add_argument("--a_b2", type=int, default=30)
    ap.add_argument("--a_ep", type=int, default=8)
    ap.add_argument("--a_sync", type=int, default=20)
    ap.add_argument("--cap", type=int, default=2)
    ap.add_argument("--cap1", type=int, default=3)
    ap.add_argument("--rot", type=int, default=1)
    ap.add_argument("--stamp", type=int, default=0)
    ap.add_argument("--dbg", type=str, default="")
    args = ap.parse_args()
    tr = build(args, linear=True)
    sites = tr.vm_sites
    em = build(args, vm_override=sites)
    out = HEADER
    out += '.amdgcn_target "amdgcn-amd-amdhsa--gfx950"\n.text\n'
    out += f".globl {NAME}\n.p2align 8\n.type {NAME},@function\n{NAME}:\n"
    lines = em.lines
    if args.dbg:
        i0 = lines.index("L_loop:")
        i1 = max(i for i, l in enumerate(lines) if "v_mfma" in l)
        body = lines[i0:i1]
        def drop(pred):
            nonlocal body
            body = [l for l in body if not pred(l)]
        if "b" in args.dbg: drop(lambda l: "s_barrier" in l)
        if "d" in args.dbg: drop(lambda l: " lds" in l and "buffer_load" in l)
        if "s" in args.dbg: drop(lambda l: "buffer_store" in l)
        if "e" in args.dbg: drop(lambda l: l.strip().startswith(("v_fma", "v_exp", "v_rcp", "v_mul", "v_cvt", "v_perm")))
        if "t" in args.dbg: drop(lambda l: l.strip().startswith(("v_exp", "v_rcp")))
        if "w" in args.dbg: drop(lambda l: "vmcnt" in l)
        if "p" in args.dbg: drop(lambda l: l.strip().startswith(("v_perm")))
        lines = lines[:i0] + body + lines[i1:]
    out += "\n".join(lines) + "\n"
    out += f""".section .rodata,"a"
.p2align 6
.amdhsa_kernel {NAME}
  .amdhsa_next_free_vgpr 512
  .amdhsa_next_free_sgpr 64
  .amdhsa_accum_offset 256
  .amdhsa_group_segment_fixed_size 0
  .amdhsa_kernarg_size 72
  .amdhsa_user_sgpr_count 2
  .amdhsa_user_sgpr_kernarg_segment_ptr 1
  .amdhsa_system_sgpr_workgroup_id_x 1
.end_amdhsa_kernel
"""
    open(args.o, "w").write(out)
    print("sites", sites, "lines", len(em.lines), "dumps", em.dumps, file=sys.stderr)


if __name__ == "__main__":
    main()
```

```python
import sys, argparse
from gen2 import HEADER, NAME, Em, Group, Segment, vr, wreg

P = 8
R = [8, 16, 24, 32]
E = [40, 48, 56, 64, 72, 80]
XF = [88, 92, 96, 100]
SC, SH = 104, 112
TMP = [120, 121, 122, 123, 124, 125, 126, 127]
vWg, vWr0, vWr1, vXp, vXq = 123, 124, 125, 126, 127
vWr0b, vWr1b = 121, 122
vXr, vXr2, vO = 1, 2, 3
vXd = [4, 5, 6, 7]
BNR = 208
BNT = 224

sX, sW, sO = 8, 12, 16
sWave, sM0, sTmp, sC, sTmp2, sTmp3, sM0q = 20, 21, 23, 28, 29, 22, 26
sWc = [24, 25, 30, 31]
sXc = [32, 33, 34, 35]
WS = 65536
WB = 24576
WT = 8192


class F:
    def __init__(self, fn, kind="o", at=0, gapsep=0, need_bar=0, isload=False):
        self.fn, self.kind, self.at, self.gapsep, self.need_bar, self.isload = fn, kind, at, gapsep, need_bar, isload


def accreg(o):
    return E[o] if o <= P - 3 else R[o & 3]


def issue_read(em, g):
    if g.s < P:
        a = ((g.kk >> 1) & 3) * 16384 + g.s * 2048 + (g.kk & 1) * 512
        em.ldsop(f"ds_read_b128 {vr(XF[g.idx & 3])}, v{vXp} offset:{a}", ("xf", g.idx))
    else:
        a = (g.s & 7) * 16384 + (g.kk >> 2) * 4096 + (g.kk & 3) * 256
        base = vXr2 if a >= 65536 else vXr
        em.ldsop(f"ds_read_b128 {vr(XF[g.idx & 3])}, v{base} offset:{a & 65535}", ("xf", g.idx))


def epilogue_ops(o, args, at=0, half=None):
    a = accreg(o)
    rs = range(8) if half is None else range(4 * half, 4 * half + 4)
    L = []
    for r in rs:
        L.append(F(lambda em, r=r: em.op(f"v_fma_f32 v{a+r}, v{a+r}, v{SC+r}, v{SH+r}"), "v"))
    for r in rs:
        L.append(F(lambda em, r=r: em.op(f"v_exp_f32 v{TMP[r]}, v{a+r}"), "t"))
    for r in rs:
        L.append(F(lambda em, r=r: em.op(f"v_fma_f32 v{TMP[r]}, v{TMP[r]}, s{sC}, s{sC}"), "v"))
    for r in rs:
        L.append(F(lambda em, r=r: em.op(f"v_rcp_f32 v{TMP[r]}, v{TMP[r]}"), "t"))
    for r in rs:
        L.append(F(lambda em, r=r: em.op(f"v_mul_f32 v{a+r}, v{a+r}, v{TMP[r]}"), "v"))
    for r in rs[::2]:
        L.append(F(lambda em, r=r: em.op(f"v_cvt_pk_bf16_f32 v{a+r//2}, v{a+r}, v{a+r+1}"), "v"))
    if half in (None, 1):
        L.append(F(lambda em: em.op(f"v_permlane16_swap_b32 v{a}, v{a+2}"), "v", gapsep=2))
        L.append(F(lambda em: em.op(f"v_permlane16_swap_b32 v{a+1}, v{a+3}"), "v", gapsep=1))
        L.append(F(lambda em: em.op(f"s_mov_b32 s{sTmp3}, {o*1024}"), "o"))
        L.append(F(lambda em: em.vmop(f"buffer_store_dwordx4 {vr(a)}, v{vO}, s[{sO}:{sO+3}], s{sTmp3} offen{args.stmod}", ("st", o)), "o", gapsep=1))
    L[0].at = at
    return L


def barrier(em):
    em.op("s_barrier")
    em.nbar += 1


def emit_segment(em, seg, nxt, PF, cap, v1, Q=None, qsep=4, qmax=99):
    allg = seg.groups + nxt
    streams = [list(s) for s in seg.streams]
    lastgap = [-99] * len(streams)
    gap = 0
    ngaps = sum(len(g.mfmas) for g in seg.groups)
    qn = 0
    for i, g in enumerate(seg.groups):
        if i + PF < len(allg):
            issue_read(em, allg[i + PF])
        em.wait_lds(("xf", g.idx))
        nm = len(g.mfmas)
        for j, (acc, w, first) in enumerate(g.mfmas):
            c = "0" if first else vr(acc)
            em.op(f"v_mfma_f32_16x16x32_bf16 {vr(acc)}, {w}, {vr(XF[g.idx & 3])}, {c}")
            em.gapno += 1
            n_left = max(cap - 2, 0) if j == nm - 1 else cap
            v_left = 8
            final = gap == ngaps - 1
            if final:
                n_left = 10**6
                nd = sum(len(st) for st in streams)
                if nd:
                    em.dumps.append((g.s, g.kk, nd))
            progress = True
            while progress and n_left > 0:
                progress = False
                for si, st in enumerate(streams):
                    if not st or n_left <= 0:
                        continue
                    f = st[0]
                    if not final:
                        if f.at > gap or gap < lastgap[si] + f.gapsep:
                            continue
                        cost = {"v": 8 if v1 else 4, "t": 8, "o": 0}[f.kind]
                        if cost > v_left:
                            continue
                        v_left -= cost
                    else:
                        if f.gapsep or f.kind == "v":
                            em.op("s_nop 1")
                    f.fn(em)
                    st.pop(0)
                    lastgap[si] = gap
                    n_left -= 1
                    progress = True
                if Q and n_left > 0 and not final and qn < qmax:
                    f = Q[0]
                    ok = em.nbar >= f.need_bar
                    if f.gapsep and em.gapno < em.lastload + qsep:
                        ok = False
                    if f.isload and em.gapno == em.lastm0:
                        ok = False
                    if ok:
                        f.fn(em)
                        Q.pop(0)
                        if f.isload:
                            em.lastload = em.gapno
                            qn += 1
                        else:
                            em.lastm0 = em.gapno
                        n_left -= 1
                        progress = True
            gap += 1
    for st in streams:
        assert not st


def dma(srd, voff, m0expr, soffexpr, tag, need_bar):
    def pre(em):
        em.op(f"s_add_u32 m0, {m0expr}")
        if soffexpr:
            em.op(soffexpr)
    return [F(pre, "o", gapsep=1, need_bar=need_bar),
            F(lambda em: em.vmop(f"buffer_load_dwordx4 v{voff}, s[{srd}:{srd+3}], s{sTmp2} offen lds", tag), "o", isload=True)]


def xchunk(c, ii, need_bar=0):
    L = []
    for i in ii:
        L += dma(sX, vXq, f"s{sM0q}, {(c & 3)*16384 + i*2048}",
                 f"s_add_u32 s{sTmp2}, s{sXc[c>>1]}, {i*1024 + (c&1)*128}", ("xc", c), need_bar)
    return L


def xstage(st, need_bar=0):
    L = []
    for c4 in range(4):
        L += dma(sX, vXd[c4], f"s{sM0}, {(st & 7)*16384 + c4*4096}",
                 f"s_mov_b32 s{sTmp2}, {st*1024}" if c4 == 0 else None, ("x", st), need_bar)
    return L


def wload(kk, need_bar=0):
    L = []
    for t in range(3):
        for h in range(2):
            L += dma(sW, vWg, f"s{sM0}, {WS + (kk & 3)*WB + t*WT + h*4096}",
                     f"s_add_u32 s{sTmp2}, s{sWc[kk>>2]}, {t*524288 + (kk&3)*32768 + h*16384}", ("w", kk), need_bar)
    return L


def bn_loads(em):
    for k, sp in enumerate((36, 38, 40, 42)):
        em.vmop(f"global_load_dwordx2 v[{BNR+4*k}:{BNR+4*k+1}], v{BNT}, s[{sp}:{sp+1}]", "bn")
        em.vmop(f"global_load_dwordx2 v[{BNR+4*k+2}:{BNR+4*k+3}], v{BNT}, s[{sp}:{sp+1}] offset:32", "bn")


def bn_compute_items():
    L = [F(lambda em: em.wait_vm("bn"), "o")]
    v = lambda s: L.append(F(lambda em: em.op(s), "v"))
    t = lambda s: L.append(F(lambda em: em.op(s), "t"))
    M, G, PK = BNT, BNT + 8, BNT + 16
    raw = lambda k, i: BNR + 4 * k + i
    for i in range(4):
        v(f"v_lshlrev_b32 v{SC+2*i}, 16, v{raw(1,i)}")
        v(f"v_and_b32 v{SC+2*i+1}, 0xffff0000, v{raw(1,i)}")

    def rnd():
        for i in range(4):
            v(f"v_cvt_pk_bf16_f32 v{PK+i}, v{SC+2*i}, v{SC+2*i+1}")
        for i in range(4):
            v(f"v_lshlrev_b32 v{SC+2*i}, 16, v{PK+i}")
            v(f"v_and_b32 v{SC+2*i+1}, 0xffff0000, v{PK+i}")
    for r in range(8):
        v(f"v_add_f32 v{SC+r}, 0x3727c5ac, v{SC+r}")
    rnd()
    for r in range(8):
        t(f"v_sqrt_f32 v{SC+r}, v{SC+r}")
    for i in range(4):
        v(f"v_lshlrev_b32 v{G+2*i}, 16, v{raw(2,i)}")
        v(f"v_and_b32 v{G+2*i+1}, 0xffff0000, v{raw(2,i)}")
    rnd()
    for r in range(8):
        t(f"v_rcp_f32 v{SC+r}, v{SC+r}")
    for i in range(4):
        v(f"v_lshlrev_b32 v{M+2*i}, 16, v{raw(0,i)}")
        v(f"v_and_b32 v{M+2*i+1}, 0xffff0000, v{raw(0,i)}")
    rnd()
    for r in range(8):
        v(f"v_mul_f32 v{SC+r}, v{SC+r}, v{G+r}")
    for i in range(4):
        v(f"v_lshlrev_b32 v{SH+2*i}, 16, v{raw(3,i)}")
        v(f"v_and_b32 v{SH+2*i+1}, 0xffff0000, v{raw(3,i)}")
    rnd()
    for r in range(8):
        v(f"v_fma_f32 v{SH+r}, -v{M+r}, v{SC+r}, v{SH+r}")
    for r in range(8):
        v(f"v_mul_f32 v{SC+r}, s{sC}, v{SC+r}")
    for r in range(8):
        v(f"v_mul_f32 v{SH+r}, s{sC}, v{SH+r}")
    return L


def wstage_items(kk, a_w, a_done):
    b = (kk & 1) * WB
    rd = (vWr0b, vWr1b) if kk & 2 else (vWr0, vWr1)
    L = [F(lambda em: em.wait_vm(("w", kk)), "o", at=a_w),
         F(barrier, "o")]
    for t in range(3):
        for db in range(2):
            for h in range(2):
                off = b + t * WT + h * 1024
                L.append(F(lambda em, t=t, db=db, h=h, off=off: em.ldsop(
                    f"ds_read_b64_tr_b16 {wreg(kk,t,db,2*h,2)}, v{rd[db]} offset:{off}", ("wr", kk)), "o", gapsep=1))
    L.append(F(lambda em: em.wait_lds(("wr", kk)), "o", at=a_done))
    return L


def emit_now(em, items):
    for f in items:
        if f.isload:
            em.op("s_nop 0")
        f.fn(em)


def prologue(em, args):
    em.op("s_cmp_ge_u32 s2, 256")
    em.op("s_cbranch_scc1 L_end")
    em.op("s_load_dwordx8 s[32:39], s[0:1], 0")
    em.op("s_load_dwordx4 s[40:43], s[0:1], 32")
    em.op("s_load_dwordx2 s[44:45], s[0:1], 48")
    if args.stamp:
        em.op("s_load_dwordx2 s[46:47], s[0:1], 64")
        em.op("s_memtime s[48:49]")
        em.op("s_memrealtime s[56:57]")
    em.op("v_lshrrev_b32 v12, 6, v0")
    em.op("v_and_b32 v0, 63, v0")
    em.op(f"v_readfirstlane_b32 s{sWave}, v12")
    em.op("s_and_b32 s3, s2, 7")
    em.op("s_lshr_b32 s4, s2, 3")
    em.op("s_and_b32 s5, s4, 3")
    em.op("s_lshr_b32 s4, s4, 2")
    if args.rot:
        em.op("s_add_u32 s6, s4, s3")
        em.op("s_and_b32 s6, s6, 3")
    else:
        em.op("s_mov_b32 s6, 0")
    em.op("s_lshl_b32 s3, s3, 3")
    em.op("s_add_u32 s3, s3, s4")
    em.op("s_lshl_b32 s3, s3, 19")
    em.op("s_lshl_b32 s5, s5, 8")
    for c4 in range(4):
        em.op(f"s_add_u32 s7, s6, {c4}")
        em.op("s_and_b32 s7, s7, 3")
        em.op(f"s_lshl_b32 s{sWc[c4]}, s7, 17")
    em.op("v_and_b32 v13, 15, v0")
    em.op("v_lshrrev_b32 v14, 4, v0")
    em.op(f"s_and_b32 s7, s{sWave}, 1")
    em.op("s_mul_i32 s4, s7, 3")
    em.op("v_and_b32 v17, 3, v0")
    em.op("v_xor_b32 v16, s4, v17")
    em.op("v_lshlrev_b32 v16, 4, v16")
    em.op("v_lshrrev_b32 v15, 5, v0")
    em.op("v_lshl_add_u32 v16, v15, 6, v16")
    em.op("v_bfe_u32 v15, v0, 2, 3")
    em.op("v_lshl_add_u32 v16, v15, 15, v16")
    em.op("s_lshl_b32 s4, s7, 18")
    em.op(f"v_add_u32 v{vXq}, s4, v16")
    em.op(f"s_lshr_b32 s4, s{sWave}, 1")
    em.op(f"s_lshl_b32 s{sM0q}, s4, 13")
    em.op("s_lshl_b32 s7, s7, 10")
    em.op(f"s_add_u32 s{sM0q}, s{sM0q}, s7")
    em.op("s_lshl_b32 s27, s4, 12")
    em.op("s_lshl_b32 s4, s4, 2")
    em.op("v_add_u32 v16, s4, v14")
    em.op("v_lshrrev_b32 v15, 1, v13")
    em.op("v_xor_b32 v16, v16, v15")
    em.op("v_lshlrev_b32 v16, 5, v16")
    em.op("v_and_b32 v15, 1, v13")
    em.op("v_lshl_add_u32 v16, v15, 4, v16")
    em.op("v_lshl_add_u32 v16, v14, 10, v16")
    em.op(f"s_lshl_b32 s7, s{sWave}, 12")
    em.op(f"v_add_u32 v{vWg}, s7, v16")
    em.op(f"s_lshl_b32 s{sM0}, s{sWave}, 10")
    em.op(f"s_mov_b32 s{sC}, 0xbfb8aa3b")
    em.op("s_waitcnt lgkmcnt(0)")
    em.op(f"s_add_u32 s{sX}, s32, s3")
    em.op(f"s_addc_u32 s{sX+1}, s33, 0")
    em.op(f"s_mov_b32 s{sX+2}, 524288")
    em.op(f"s_mov_b32 s{sX+3}, 0x00020000")
    em.op(f"s_add_u32 s{sW}, s34, s5")
    em.op(f"s_addc_u32 s{sW+1}, s35, 0")
    em.op(f"s_sub_u32 s{sW+2}, 1572864, s5")
    em.op(f"s_mov_b32 s{sW+3}, 0x00020000")
    for c4 in range(4):
        em.op(f"s_lshr_b32 s4, s{sWc[c4]}, 9")
        em.op(f"s_add_u32 s{sXc[c4]}, s4, s27")


def prologue2(em):
    em.op("s_add_u32 s3, s3, s5")
    em.op(f"s_add_u32 s{sO}, s44, s3")
    em.op(f"s_addc_u32 s{sO+1}, s45, 0")
    em.op(f"s_sub_u32 s{sO+2}, 524288, s5")
    em.op(f"s_mov_b32 s{sO+3}, 0x00020000")
    em.op(f"s_lshr_b32 s7, s{sWave}, 1")
    em.op("s_mul_i32 s7, s7, 3")
    em.op("v_xor_b32 v17, s7, v17")
    em.op("v_lshlrev_b32 v17, 4, v17")
    em.op("v_lshl_add_u32 v17, v14, 6, v17")
    em.op("v_bfe_u32 v16, v0, 2, 2")
    em.op("v_lshl_add_u32 v17, v16, 15, v17")
    em.op(f"s_lshl_b32 s7, s{sWave}, 17")
    em.op("v_add_u32 v17, s7, v17")
    for c4 in range(4):
        em.op(f"s_lshr_b32 s7, s{sWc[c4]}, 9")
        em.op(f"v_add_u32 v{vXd[c4]}, s7, v17")
    em.op(f"s_lshl_b32 s7, s{sWave}, 6")
    em.op("s_add_u32 s4, s7, s5")
    em.op("v_lshlrev_b32 v16, 3, v14")
    em.op(f"v_add_u32 v{BNT}, s4, v16")
    em.op("v_lshrrev_b32 v15, 3, v13")
    em.op("v_mul_u32_u24 v17, 3, v15")
    em.op("v_xor_b32 v17, v14, v17")
    em.op("v_lshlrev_b32 v17, 4, v17")
    em.op("v_lshl_add_u32 v18, v15, 10, v17")
    em.op("v_and_b32 v16, 7, v13")
    em.op(f"v_lshl_add_u32 v{vXp}, v16, 6, v18")
    em.op("v_lshrrev_b32 v16, 2, v13")
    em.op("v_lshl_add_u32 v17, v16, 10, v17")
    em.op("v_and_b32 v16, 3, v13")
    em.op(f"v_lshl_add_u32 v{vXr}, v16, 6, v17")
    em.op(f"v_add_u32 v{vXr2}, 0x10000, v{vXr}")
    em.op("v_lshrrev_b32 v16, 2, v13")
    em.op("v_and_b32 v17, 1, v14")
    em.op("v_lshl_add_u32 v17, v17, 2, v16")
    em.op(f"s_lshl_b32 s3, s{sWave}, 1")
    em.op("v_xor_b32 v17, s3, v17")
    em.op("v_lshlrev_b32 v17, 5, v17")
    em.op("v_lshl_add_u32 v16, v14, 3, v16")
    em.op("v_lshl_add_u32 v17, v16, 8, v17")
    em.op("v_and_b32 v16, 3, v0")
    em.op("v_lshl_add_u32 v17, v16, 3, v17")
    em.op(f"v_add_u32 v{vWr0}, {WS}, v17")
    em.op(f"v_xor_b32 v{vWr1}, 32, v{vWr0}")
    em.op(f"v_add_u32 v{vWr0b}, {2*WB}, v{vWr0}")
    em.op(f"v_add_u32 v{vWr1b}, {2*WB}, v{vWr1}")
    em.op("v_and_b32 v16, 1, v14")
    em.op("v_lshlrev_b32 v16, 5, v16")
    em.op("v_lshrrev_b32 v17, 1, v14")
    em.op("v_lshl_add_u32 v16, v17, 4, v16")
    em.op("v_lshl_add_u32 v16, v13, 15, v16")
    em.op(f"v_add_u32 v{vO}, s7, v16")


def build(args):
    em = Em()
    em.nbar = 0
    em.gapno = 0
    em.lastload = -99
    em.lastm0 = -99
    prologue(em, args)
    emit_now(em, xchunk(0, range(4)) + wload(0))
    prologue2(em)
    emit_now(em, wload(1))
    bn_loads(em)
    emit_now(em, xchunk(1, range(4)))
    pre = [wload(2), xchunk(2, range(4)), wload(3)]
    for it in pre[:args.pre]:
        emit_now(em, it)
    Q = []
    for it in pre[args.pre:]:
        Q += it
    B = lambda k: k + 2
    for kk in range(12):
        c = (kk + 6) // 2
        if c <= 7:
            Q += xchunk(c, (0, 1) if kk % 2 == 0 else (2, 3), B(2 * c - 6) if c >= 4 else 0)
        if kk + 4 == 15:
            Q += xstage(8, B(10))
        Q += wload(kk + 4, B(kk))
    Q += xstage(9, B(12)) + xstage(10, B(14))

    groups = []
    started = set()

    def mk(s, kk, taps=(0, 1, 2)):
        m = []
        for t in taps:
            o = s + 1 - t
            if o < 0 or o > 31:
                continue
            first = o not in started
            started.add(o)
            for db in range(2):
                m.append((accreg(o) + 4 * db, wreg(kk, t, db), first))
        g = Group(s, kk, m)
        g.idx = len(groups)
        groups.append(g)
        return g

    p1 = [Segment([mk(p, kk) for p in range(P)]) for kk in range(16)]
    pos = {s: Segment([mk(s, kk) for kk in range(16)]) for s in range(P, 31)}
    pos[31] = Segment([mk(31, kk, (2,)) for kk in range(16)] + [mk(31, kk, (1,)) for kk in range(16)])

    bn = bn_compute_items()
    nb = (len(bn) + args.bnk - 1) // args.bnk
    for kk in range(16):
        sg = p1[kk]
        if kk < 15:
            sg.streams.append(wstage_items(kk + 1, args.a_w, args.a_done))
        if 1 <= kk <= args.bnk:
            it, bn = bn[:nb], bn[nb:]
            sg.streams.append(it)
    assert not bn and args.bnk <= 11

    it = wstage_items(0, 0, 0)
    emit_now(em, it[:-1])
    for g in groups[:args.PF]:
        issue_read(em, g)
    emit_now(em, it[-1:])
    if args.stamp:
        em.op("s_memtime s[50:51]")
        em.op("s_memrealtime s[58:59]")

    syncs = [s for s in range(P, 31) if s < args.sy0 or (s - args.sy0) % args.sy == 0]
    nb0 = 16
    for st in range(11, 32):
        first_ok = min(s for s in syncs if s >= max(st - 7, P))
        Q += xstage(st, nb0 + syncs.index(first_ok) + 1)
    halves = [(o, h) for o in range(P - 2) for h in range(2)]
    for s in range(P, 32):
        ep = epilogue_ops(s - 2, args, at=args.a_ep)
        if halves:
            o, h = halves.pop(0)
            ep += epilogue_ops(o, args, half=h)
        sy = []
        if s in syncs:
            later = [x for x in syncs if x > s]
            need = later[0] if later else 31
            sy.append(F(lambda em, need=need: em.wait_vm(("x", need)), "o", at=args.a_sync))
            sy.append(F(barrier, "o"))
        if s == 31:
            ep[0].at = 4
            ep += epilogue_ops(30, args, at=35)
        pos[s].streams = [sy, ep]

    for kk in range(16):
        nxt = p1[kk + 1].groups if kk < 15 else pos[P].groups
        if args.fine == 1:
            em.op(f"s_memtime s[{64+2*kk}:{65+2*kk}]")
        emit_segment(em, p1[kk], nxt, args.PF, args.cap1, False, Q, args.qsep1)
    if args.fine == 1:
        em.op(f"s_memtime s[96:97]")
    if args.stamp:
        em.op("s_memtime s[52:53]")
        em.op("s_memrealtime s[60:61]")
    for s in range(P, 31):
        if args.fine == 2 and s - P < 19:
            em.op(f"s_memtime s[{64+2*(s-P)}:{65+2*(s-P)}]")
        emit_segment(em, pos[s], pos[s + 1].groups, args.PF, args.cap, args.v1, Q, args.qsep, args.qmax)
    assert not Q, len(Q)
    emit_segment(em, pos[31], [], args.PF, 3, False)
    em.op("s_nop 7")
    for f in epilogue_ops(31, args):
        if f.gapsep:
            em.op("s_nop 1")
        f.fn(em)
    if args.stamp:
        em.op("s_waitcnt vmcnt(0) lgkmcnt(0)")
        em.op("s_memtime s[54:55]")
        em.op("s_memrealtime s[62:63]")
        em.op("s_waitcnt lgkmcnt(0)")
        em.op("s_lshl_b32 s3, s2, 3")
        em.op(f"s_add_u32 s3, s3, s{sWave}")
        em.op("s_lshl_b32 s3, s3, 6")
        em.op("v_mov_b32 v0, s3")
        for i in range(16):
            em.op(f"v_mov_b32 v{4+i}, s{48+i}")
        for i in range(4):
            em.op(f"global_store_dwordx4 v0, v[{4+4*i}:{7+4*i}], s[46:47] offset:{16*i}")
        if args.fine:
            em.op("v_add_u32 v0, 0x100000, v0")
            em.op("v_lshlrev_b32 v0, 1, v0")
            for i in range(19):
                em.op(f"v_mov_b32 v{4+i}, s{64+2*i}")
            for i in range(5):
                em.op(f"global_store_dwordx4 v0, v[{4+4*i}:{7+4*i}], s[46:47] offset:{16*i}")
    em.label("L_end")
    em.op("s_endpgm")
    return em


def main():
    ap = argparse.ArgumentParser()
    ap.add_argument("-o", default="standalone__batchnorm__sampling.s")
    ap.add_argument("--PF", type=int, default=3)
    ap.add_argument("--pre", type=int, default=1)
    ap.add_argument("--a_w", type=int, default=10)
    ap.add_argument("--a_done", type=int, default=43)
    ap.add_argument("--a_ep", type=int, default=8)
    ap.add_argument("--a_sync", type=int, default=20)
    ap.add_argument("--cap", type=int, default=2)
    ap.add_argument("--cap1", type=int, default=3)
    ap.add_argument("--qsep1", type=int, default=3)
    ap.add_argument("--qsep", type=int, default=6)
    ap.add_argument("--qmax", type=int, default=8)
    ap.add_argument("--bnk", type=int, default=6)
    ap.add_argument("--sy", type=int, default=2)
    ap.add_argument("--sy0", type=int, default=10)
    ap.add_argument("--v1", type=int, default=1)
    ap.add_argument("--rot", type=int, default=1)
    ap.add_argument("--stmod", type=str, default="")
    ap.add_argument("--stamp", type=int, default=0)
    ap.add_argument("--fine", type=int, default=0)
    ap.add_argument("--dbg", type=str, default="")
    args = ap.parse_args()
    em = build(args)
    out = HEADER
    out += '.amdgcn_target "amdgcn-amd-amdhsa--gfx950"\n.text\n'
    out += f".globl {NAME}\n.p2align 8\n.type {NAME},@function\n{NAME}:\n"
    lines = em.lines
    if args.dbg:
        i0 = min(i for i, l in enumerate(lines) if "v_mfma" in l)
        i1 = max(i for i, l in enumerate(lines) if "v_mfma" in l)
        body = lines[i0:i1]

        def drop(pred):
            nonlocal body
            body = [l for l in body if not pred(l)]
        if "b" in args.dbg: drop(lambda l: "s_barrier" in l)
        if "d" in args.dbg: drop(lambda l: " lds" in l and "buffer_load" in l)
        if "s" in args.dbg: drop(lambda l: "buffer_store" in l)
        if "e" in args.dbg: drop(lambda l: l.strip().startswith(("v_fma", "v_exp", "v_rcp", "v_mul", "v_cvt", "v_perm", "v_lshl", "v_and", "v_add", "v_sqrt")))
        if "T" in args.dbg: drop(lambda l: "_tr_" in l)
        if "v" in args.dbg: drop(lambda l: "vmcnt" in l)
        lines = lines[:i0] + body + lines[i1:]
    out += "\n".join(lines) + "\n"
    out += f""".section .rodata,"a"
.p2align 6
.amdhsa_kernel {NAME}
  .amdhsa_next_free_vgpr 512
  .amdhsa_next_free_sgpr 102
  .amdhsa_accum_offset 256
  .amdhsa_group_segment_fixed_size 0
  .amdhsa_kernarg_size 72
  .amdhsa_user_sgpr_count 2
  .amdhsa_user_sgpr_kernarg_segment_ptr 1
  .amdhsa_system_sgpr_workgroup_id_x 1
.end_amdhsa_kernel
"""
    open(args.o, "w").write(out)
    print("lines", len(em.lines), "dumps", em.dumps, file=sys.stderr)


if __name__ == "__main__":
    main()
```

```python
import sys, argparse
from gen2 import HEADER, NAME, Em, Group, Segment, vr, wreg

P = 8
R = [8, 16, 24, 32]
E = [40, 48, 56, 64, 72, 80]
XF = [88, 92, 96, 100]
SC, SH = 104, 112
TMP = [120, 121, 122, 123, 124, 125, 126, 127]
vWg, vWr0, vWr1, vXp, vXq = 123, 124, 125, 126, 127
vWr0b, vWr1b = 121, 122
vXr, vXr2, vO = 1, 2, 3
vXd = [4, 5, 6, 7]
BNR = 208
BNT = 224

sX, sW, sO = 8, 12, 16
sWave, sM0, sTmp, sC, sTmp2, sTmp3, sM0q = 20, 21, 23, 28, 29, 22, 26
sWc = [24, 25, 30, 31]
sMa, sMb, sXo, sOo, sCnt = 36, 37, 38, 39, 40
LOOP0 = 20
sXc = [32, 33, 34, 35]
WS = 65536
WB = 24576
WT = 8192


class F:
    def __init__(self, fn, kind="o", at=0, gapsep=0, need_bar=0, isload=False):
        self.fn, self.kind, self.at, self.gapsep, self.need_bar, self.isload = fn, kind, at, gapsep, need_bar, isload


def accreg(o):
    return E[o] if o <= P - 3 else R[o & 3]


def issue_read(em, g):
    if g.s < P:
        a = ((g.kk >> 1) & 3) * 16384 + g.s * 2048 + (g.kk & 1) * 512
        em.ldsop(f"ds_read_b128 {vr(XF[g.idx & 3])}, v{vXp} offset:{a}", ("xf", g.idx))
    else:
        a = (g.s & 7) * 16384 + (g.kk >> 2) * 4096 + (g.kk & 3) * 256
        base = vXr2 if a >= 65536 else vXr
        if em.loop_it is not None:
            base = vXr if (g.s - LOOP0) // 4 == em.loop_it else vXr2
        em.ldsop(f"ds_read_b128 {vr(XF[g.idx & 3])}, v{base} offset:{a & 65535}", ("xf", g.idx))


def epilogue_ops(o, args, at=0, half=None):
    a = accreg(o)
    rs = range(8) if half is None else range(4 * half, 4 * half + 4)
    L = []
    for r in rs:
        L.append(F(lambda em, r=r: em.op(f"v_fma_f32 v{a+r}, v{a+r}, v{SC+r}, v{SH+r}"), "v"))
    for r in rs:
        L.append(F(lambda em, r=r: em.op(f"v_exp_f32 v{TMP[r]}, v{a+r}"), "t"))
    for r in rs:
        L.append(F(lambda em, r=r: em.op(f"v_fma_f32 v{TMP[r]}, v{TMP[r]}, s{sC}, s{sC}"), "v"))
    for r in rs:
        L.append(F(lambda em, r=r: em.op(f"v_rcp_f32 v{TMP[r]}, v{TMP[r]}"), "t"))
    for r in rs:
        L.append(F(lambda em, r=r: em.op(f"v_mul_f32 v{a+r}, v{a+r}, v{TMP[r]}"), "v"))
    for r in rs[::2]:
        L.append(F(lambda em, r=r: em.op(f"v_cvt_pk_bf16_f32 v{a+r//2}, v{a+r}, v{a+r+1}"), "v"))
    if half in (None, 1):
        L.append(F(lambda em: em.op(f"v_permlane16_swap_b32 v{a}, v{a+2}"), "v", gapsep=2))
        L.append(F(lambda em: em.op(f"v_permlane16_swap_b32 v{a+1}, v{a+3}"), "v", gapsep=1))
        if o + 2 >= LOOP0 and o < 30:
            L.append(F(lambda em: em.op(f"s_add_u32 s{sOo}, s{sOo}, 1024"), "o"))
            L.append(F(lambda em: em.vmop(f"buffer_store_dwordx4 {vr(a)}, v{vO}, s[{sO}:{sO+3}], s{sOo} offen{args.stmod}", ("st", o)), "x", gapsep=1))
        else:
            L.append(F(lambda em: em.op(f"s_mov_b32 s{sTmp3}, {o*1024}"), "o"))
            L.append(F(lambda em: em.vmop(f"buffer_store_dwordx4 {vr(a)}, v{vO}, s[{sO}:{sO+3}], s{sTmp3} offen{args.stmod}", ("st", o)), "x", gapsep=1))
    L[0].at = at
    return L


def barrier(em):
    em.op("s_barrier")
    em.nbar += 1


def emit_segment(em, seg, nxt, PF, cap, v1, Q=None, qsep=4, qmax=99):
    allg = seg.groups + nxt
    streams = [list(s) for s in seg.streams]
    lastgap = [-99] * len(streams)
    gap = 0
    ngaps = sum(len(g.mfmas) for g in seg.groups)
    qn = 0
    for i, g in enumerate(seg.groups):
        if i + PF < len(allg):
            issue_read(em, allg[i + PF])
        em.wait_lds(("xf", g.idx))
        nm = len(g.mfmas)
        for j, (acc, w, first) in enumerate(g.mfmas):
            c = "0" if first else vr(acc)
            em.op(f"v_mfma_f32_16x16x32_bf16 {vr(acc)}, {w}, {vr(XF[g.idx & 3])}, {c}")
            em.gapno += 1
            n_left = max(cap - 2, 0) if j == nm - 1 else cap
            v_left = 8
            final = gap == ngaps - 1
            if final:
                n_left = 10**6
                nd = sum(len(st) for st in streams)
                if nd:
                    em.dumps.append((g.s, g.kk, nd))
            progress = True
            while progress and n_left > 0:
                progress = False
                if Q and Q[0].isload and em.gapno != em.lastm0 and not final and qn < qmax and v_left >= em.xcost and em.qfirst:
                    f = Q.pop(0)
                    f.fn(em)
                    em.lastload = em.gapno
                    v_left -= em.xcost
                    qn += 1
                    n_left -= 1
                    progress = True
                    continue
                for si, st in enumerate(streams):
                    if not st or n_left <= 0:
                        continue
                    f = st[0]
                    if not final:
                        if f.at > gap or gap < lastgap[si] + f.gapsep:
                            continue
                        cost = {"v": 8 if v1 else 4, "t": 8, "o": 0, "x": em.xcost}[f.kind]
                        if cost > v_left:
                            continue
                        v_left -= cost
                    else:
                        if f.gapsep or f.kind == "v":
                            em.op("s_nop 1")
                    f.fn(em)
                    st.pop(0)
                    lastgap[si] = gap
                    n_left -= 1
                    progress = True
                if Q and n_left > 0 and not final and qn < qmax:
                    f = Q[0]
                    ok = em.nbar >= f.need_bar
                    if f.gapsep and em.gapno < em.lastload + qsep:
                        ok = False
                    if f.isload and em.gapno == em.lastm0:
                        ok = False
                    if f.isload and v_left < em.xcost:
                        ok = False
                    if ok:
                        f.fn(em)
                        Q.pop(0)
                        if f.isload:
                            em.lastload = em.gapno
                            v_left -= em.xcost
                            qn += 1
                        else:
                            em.lastm0 = em.gapno
                        n_left -= 1
                        progress = True
            gap += 1
    for st in streams:
        assert not st


def tail_segment(em, seg, args):
    g0 = seg.groups[0].idx
    regs = {}
    for kk in range(16):
        regs[kk] = XF[(g0 + kk) & 3] if kk < 4 else E[0] + 4 * (kk - 4)
    for kk in range(args.PF, 16):
        a = 3 * 16384 + (kk >> 2) * 4096 + (kk & 3) * 256
        em.ldsop(f"ds_read_b128 {vr(regs[kk])}, v{vXr} offset:{a}", ("xf", g0 + kk))
    st = list(seg.streams[1])
    last = -99
    gap = 0
    for i, g in enumerate(seg.groups):
        if i < 16:
            em.wait_lds(("xf", g0 + i))
        for (acc, w, first) in g.mfmas:
            em.op(f"v_mfma_f32_16x16x32_bf16 {vr(acc)}, {w}, {vr(regs[g.kk])}, {vr(acc)}")
            v_left = 8
            while st and st[0].at <= gap and gap >= last + st[0].gapsep:
                cost = {"v": 4, "t": 8, "o": 0, "x": 8}[st[0].kind]
                if cost > v_left:
                    break
                v_left -= cost
                st.pop(0).fn(em)
                last = gap
            gap += 1
    if st:
        em.dumps.append(("tail", len(st)))
    for f in st:
        if f.gapsep:
            em.op("s_nop 1")
        f.fn(em)


def dma(srd, voff, m0expr, soffexpr, tag, need_bar):
    def pre(em):
        em.op(f"s_add_u32 m0, {m0expr}")
        if soffexpr:
            em.op(soffexpr)
    return [F(pre, "o", gapsep=1, need_bar=need_bar),
            F(lambda em: em.vmop(f"buffer_load_dwordx4 v{voff}, s[{srd}:{srd+3}], s{sTmp2} offen lds", tag), "o", isload=True)]


def xchunk(c, ii, need_bar=0):
    L = []
    for i in ii:
        L += dma(sX, vXq, f"s{sM0q}, {(c & 3)*16384 + i*2048}",
                 f"s_add_u32 s{sTmp2}, s{sXc[c>>1]}, {i*1024 + (c&1)*128}", ("xc", c), need_bar)
    return L


def xstage(st, need_bar=0):
    L = []
    for c4 in range(4):
        L += dma(sX, vXd[c4], f"s{sM0}, {(st & 7)*16384 + c4*4096}",
                 f"s_mov_b32 s{sTmp2}, {st*1024}" if c4 == 0 else None, ("x", st), need_bar)
    return L


def xstage_loop(s, st, need_bar=0):
    same = (st - LOOP0) // 4 % 2 == (s - LOOP0) // 4 % 2
    sm = sMa if same else sMb
    L = []

    def adv(em):
        em.op(f"s_add_u32 s{sXo}, s{sXo}, 1024")
        em.op(f"s_cmp_lt_u32 s{sXo}, 32768")
        em.op(f"s_cselect_b32 s{sTmp2}, s{sXo}, 0x100000")
    L.append(F(adv, "o", need_bar=need_bar))
    for c4 in range(4):
        L += dma(sX, vXd[c4], f"s{sm}, {(st & 3)*16384 + c4*4096}", None, ("x", st), need_bar)
    return L


def code_prefetch(label, lds):
    if lds:
        def pre(em):
            em.op(f"s_add_u32 m0, s{sM0}, 131072")
            em.op(f"s_mov_b32 s{sTmp2}, {label}-L_pc")
        return [F(pre, "o", gapsep=1),
                F(lambda em: em.vmop(f"buffer_load_dword v0, s[64:67], s{sTmp2} offen lds", "cpf"), "o", isload=True)]
    return [F(lambda em: em.op(f"s_mov_b32 s{sTmp2}, {label}-L_pc"), "o", gapsep=1),
            F(lambda em: em.vmop(f"buffer_load_dword v120, v0, s[64:67], s{sTmp2} offen", "cpf"), "o", isload=True)]


def wload(kk, need_bar=0):
    L = []
    for t in range(3):
        for h in range(2):
            L += dma(sW, vWg, f"s{sM0}, {WS + (kk & 3)*WB + t*WT + h*4096}",
                     f"s_add_u32 s{sTmp2}, s{sWc[kk>>2]}, {t*524288 + (kk&3)*32768 + h*16384}", ("w", kk), need_bar)
    return L


def bn_loads(em):
    for k, sp in enumerate((36, 38, 40, 42)):
        em.vmop(f"global_load_dwordx2 v[{BNR+4*k}:{BNR+4*k+1}], v{BNT}, s[{sp}:{sp+1}]", "bn")
        em.vmop(f"global_load_dwordx2 v[{BNR+4*k+2}:{BNR+4*k+3}], v{BNT}, s[{sp}:{sp+1}] offset:32", "bn")


def bn_compute_items():
    L = [F(lambda em: em.wait_vm("bn"), "o")]
    v = lambda s: L.append(F(lambda em: em.op(s), "v"))
    t = lambda s: L.append(F(lambda em: em.op(s), "t"))
    M, G, PK = BNT, BNT + 8, BNT + 16
    raw = lambda k, i: BNR + 4 * k + i
    for i in range(4):
        v(f"v_lshlrev_b32 v{SC+2*i}, 16, v{raw(1,i)}")
        v(f"v_and_b32 v{SC+2*i+1}, 0xffff0000, v{raw(1,i)}")

    def rnd():
        for i in range(4):
            v(f"v_cvt_pk_bf16_f32 v{PK+i}, v{SC+2*i}, v{SC+2*i+1}")
        for i in range(4):
            v(f"v_lshlrev_b32 v{SC+2*i}, 16, v{PK+i}")
            v(f"v_and_b32 v{SC+2*i+1}, 0xffff0000, v{PK+i}")
    for r in range(8):
        v(f"v_add_f32 v{SC+r}, 0x3727c5ac, v{SC+r}")
    rnd()
    for r in range(8):
        t(f"v_sqrt_f32 v{SC+r}, v{SC+r}")
    for i in range(4):
        v(f"v_lshlrev_b32 v{G+2*i}, 16, v{raw(2,i)}")
        v(f"v_and_b32 v{G+2*i+1}, 0xffff0000, v{raw(2,i)}")
    rnd()
    for r in range(8):
        t(f"v_rcp_f32 v{SC+r}, v{SC+r}")
    for i in range(4):
        v(f"v_lshlrev_b32 v{M+2*i}, 16, v{raw(0,i)}")
        v(f"v_and_b32 v{M+2*i+1}, 0xffff0000, v{raw(0,i)}")
    rnd()
    for r in range(8):
        v(f"v_mul_f32 v{SC+r}, v{SC+r}, v{G+r}")
    for i in range(4):
        v(f"v_lshlrev_b32 v{SH+2*i}, 16, v{raw(3,i)}")
        v(f"v_and_b32 v{SH+2*i+1}, 0xffff0000, v{raw(3,i)}")
    rnd()
    for r in range(8):
        v(f"v_fma_f32 v{SH+r}, -v{M+r}, v{SC+r}, v{SH+r}")
    for r in range(8):
        v(f"v_mul_f32 v{SC+r}, s{sC}, v{SC+r}")
    for r in range(8):
        v(f"v_mul_f32 v{SH+r}, s{sC}, v{SH+r}")
    return L


def wstage_items(kk, a_w, a_done):
    b = (kk & 1) * WB
    rd = (vWr0b, vWr1b) if kk & 2 else (vWr0, vWr1)
    L = [F(lambda em: em.wait_vm(("w", kk)), "o", at=a_w),
         F(barrier, "o")]
    for t in range(3):
        for db in range(2):
            for h in range(2):
                off = b + t * WT + h * 1024
                L.append(F(lambda em, t=t, db=db, h=h, off=off: em.ldsop(
                    f"ds_read_b64_tr_b16 {wreg(kk,t,db,2*h,2)}, v{rd[db]} offset:{off}", ("wr", kk)), "o", gapsep=1))
    L.append(F(lambda em: em.wait_lds(("wr", kk)), "o", at=a_done))
    return L


def emit_now(em, items):
    for f in items:
        if f.isload:
            em.op("s_nop 0")
        f.fn(em)


def prologue(em, args):
    em.op("s_cmp_ge_u32 s2, 256")
    em.op("s_cbranch_scc1 L_end")
    em.op("s_load_dwordx8 s[32:39], s[0:1], 0")
    em.op("s_load_dwordx4 s[40:43], s[0:1], 32")
    em.op("s_load_dwordx2 s[44:45], s[0:1], 48")
    if args.stamp:
        em.op("s_load_dwordx2 s[46:47], s[0:1], 64")
        em.op("s_memtime s[48:49]")
        em.op("s_memrealtime s[56:57]")
    if args.cpf:
        em.op("s_getpc_b64 s[64:65]")
        em.label("L_pc")
        em.op("s_and_b32 s65, s65, 0xffff")
        em.op("s_mov_b32 s66, L_code_end-L_pc")
        em.op("s_mov_b32 s67, 0x00020000")
    em.op("v_lshrrev_b32 v12, 6, v0")
    em.op("v_and_b32 v11, 63, v0")
    em.op("v_lshlrev_b32 v0, 6, v0")
    if args.cpf:
        em.vmop("buffer_load_dword v255, v0, s[64:67], 0 offen", "cpf")
    em.op(f"v_readfirstlane_b32 s{sWave}, v12")
    em.op("s_and_b32 s3, s2, 7")
    em.op("s_lshr_b32 s4, s2, 3")
    em.op("s_and_b32 s5, s4, 3")
    em.op("s_lshr_b32 s4, s4, 2")
    if args.rot == 1:
        em.op("s_add_u32 s6, s4, s3")
        em.op("s_and_b32 s6, s6, 3")
    elif args.rot == 2:
        em.op("s_and_b32 s6, s3, 3")
    elif args.rot == 3:
        em.op("s_lshl_b32 s6, s4, 1")
        em.op("s_add_u32 s6, s6, s3")
        em.op("s_and_b32 s6, s6, 3")
    elif args.rot == 4:
        em.op("s_lshr_b32 s6, s3, 1")
    else:
        em.op("s_mov_b32 s6, 0")
    em.op("s_lshl_b32 s3, s3, 3")
    em.op("s_add_u32 s3, s3, s4")
    em.op("s_lshl_b32 s3, s3, 19")
    em.op("s_lshl_b32 s5, s5, 8")
    for c4 in range(4):
        em.op(f"s_add_u32 s7, s6, {c4}")
        em.op("s_and_b32 s7, s7, 3")
        em.op(f"s_lshl_b32 s{sWc[c4]}, s7, 17")
    em.op("v_and_b32 v13, 15, v11")
    em.op("v_lshrrev_b32 v14, 4, v11")
    em.op(f"s_and_b32 s7, s{sWave}, 1")
    em.op("s_mul_i32 s4, s7, 3")
    em.op("v_and_b32 v17, 3, v11")
    em.op("v_xor_b32 v16, s4, v17")
    em.op("v_lshlrev_b32 v16, 4, v16")
    em.op("v_lshrrev_b32 v15, 5, v11")
    em.op("v_lshl_add_u32 v16, v15, 6, v16")
    em.op("v_bfe_u32 v15, v11, 2, 3")
    em.op("v_lshl_add_u32 v16, v15, 15, v16")
    em.op("s_lshl_b32 s4, s7, 18")
    em.op(f"v_add_u32 v{vXq}, s4, v16")
    em.op(f"s_lshr_b32 s4, s{sWave}, 1")
    em.op(f"s_lshl_b32 s{sM0q}, s4, 13")
    em.op("s_lshl_b32 s7, s7, 10")
    em.op(f"s_add_u32 s{sM0q}, s{sM0q}, s7")
    em.op("s_lshl_b32 s27, s4, 12")
    em.op("s_lshl_b32 s4, s4, 2")
    em.op("v_add_u32 v16, s4, v14")
    em.op("v_lshrrev_b32 v15, 1, v13")
    em.op("v_xor_b32 v16, v16, v15")
    em.op("v_lshlrev_b32 v16, 5, v16")
    em.op("v_and_b32 v15, 1, v13")
    em.op("v_lshl_add_u32 v16, v15, 4, v16")
    em.op("v_lshl_add_u32 v16, v14, 10, v16")
    em.op(f"s_lshl_b32 s7, s{sWave}, 12")
    em.op(f"v_add_u32 v{vWg}, s7, v16")
    em.op(f"s_lshl_b32 s{sM0}, s{sWave}, 10")
    em.op(f"s_mov_b32 s{sC}, 0xbfb8aa3b")
    em.op("s_waitcnt lgkmcnt(0)")
    em.op(f"s_add_u32 s{sX}, s32, s3")
    em.op(f"s_addc_u32 s{sX+1}, s33, 0")
    em.op(f"s_mov_b32 s{sX+2}, 524288")
    em.op(f"s_mov_b32 s{sX+3}, 0x00020000")
    em.op(f"s_add_u32 s{sW}, s34, s5")
    em.op(f"s_addc_u32 s{sW+1}, s35, 0")
    em.op(f"s_sub_u32 s{sW+2}, 1572864, s5")
    em.op(f"s_mov_b32 s{sW+3}, 0x00020000")
    for c4 in range(4):
        em.op(f"s_lshr_b32 s4, s{sWc[c4]}, 9")
        em.op(f"s_add_u32 s{sXc[c4]}, s4, s27")


def prologue2(em):
    em.op("s_add_u32 s3, s3, s5")
    em.op(f"s_add_u32 s{sO}, s44, s3")
    em.op(f"s_addc_u32 s{sO+1}, s45, 0")
    em.op(f"s_sub_u32 s{sO+2}, 524288, s5")
    em.op(f"s_mov_b32 s{sO+3}, 0x00020000")
    em.op(f"s_lshr_b32 s7, s{sWave}, 1")
    em.op("s_mul_i32 s7, s7, 3")
    em.op("v_xor_b32 v17, s7, v17")
    em.op("v_lshlrev_b32 v17, 4, v17")
    em.op("v_lshl_add_u32 v17, v14, 6, v17")
    em.op("v_bfe_u32 v16, v11, 2, 2")
    em.op("v_lshl_add_u32 v17, v16, 15, v17")
    em.op(f"s_lshl_b32 s7, s{sWave}, 17")
    em.op("v_add_u32 v17, s7, v17")
    for c4 in range(4):
        em.op(f"s_lshr_b32 s7, s{sWc[c4]}, 9")
        em.op(f"v_add_u32 v{vXd[c4]}, s7, v17")
    em.op(f"s_lshl_b32 s7, s{sWave}, 6")
    em.op("s_add_u32 s4, s7, s5")
    em.op("v_lshlrev_b32 v16, 3, v14")
    em.op(f"v_add_u32 v{BNT}, s4, v16")
    em.op("v_lshrrev_b32 v15, 3, v13")
    em.op("v_mul_u32_u24 v17, 3, v15")
    em.op("v_xor_b32 v17, v14, v17")
    em.op("v_lshlrev_b32 v17, 4, v17")
    em.op("v_lshl_add_u32 v18, v15, 10, v17")
    em.op("v_and_b32 v16, 7, v13")
    em.op(f"v_lshl_add_u32 v{vXp}, v16, 6, v18")
    em.op("v_lshrrev_b32 v16, 2, v13")
    em.op("v_lshl_add_u32 v17, v16, 10, v17")
    em.op("v_and_b32 v16, 3, v13")
    em.op(f"v_lshl_add_u32 v{vXr}, v16, 6, v17")
    em.op(f"v_add_u32 v{vXr2}, 0x10000, v{vXr}")
    em.op("v_lshrrev_b32 v16, 2, v13")
    em.op("v_and_b32 v17, 1, v14")
    em.op("v_lshl_add_u32 v17, v17, 2, v16")
    em.op(f"s_lshl_b32 s3, s{sWave}, 1")
    em.op("v_xor_b32 v17, s3, v17")
    em.op("v_lshlrev_b32 v17, 5, v17")
    em.op("v_lshl_add_u32 v16, v14, 3, v16")
    em.op("v_lshl_add_u32 v17, v16, 8, v17")
    em.op("v_and_b32 v16, 3, v11")
    em.op("v_lshl_add_u32 v17, v16, 3, v17")
    em.op(f"v_add_u32 v{vWr0}, {WS}, v17")
    em.op(f"v_xor_b32 v{vWr1}, 32, v{vWr0}")
    em.op(f"v_add_u32 v{vWr0b}, {2*WB}, v{vWr0}")
    em.op(f"v_add_u32 v{vWr1b}, {2*WB}, v{vWr1}")
    em.op("v_and_b32 v16, 1, v14")
    em.op("v_lshlrev_b32 v16, 5, v16")
    em.op("v_lshrrev_b32 v17, 1, v14")
    em.op("v_lshl_add_u32 v16, v17, 4, v16")
    em.op("v_lshl_add_u32 v16, v13, 15, v16")
    em.op(f"v_add_u32 v{vO}, s7, v16")


def build(args, vm_override=None, linear=False):
    em = Em()
    em.vm_override = vm_override
    em.loop_it = None
    em.xcost = args.xcost1
    em.qfirst = True
    em.nbar = 0
    em.gapno = 0
    em.lastload = -99
    em.lastm0 = -99
    prologue(em, args)
    emit_now(em, (wload(0) + xchunk(0, range(4)) + [F(lambda em: em.vm.append(("w", 0)) if False else None)]) if args.w0first else (xchunk(0, range(4)) + wload(0)))
    def touch_x(em):
        em.op("v_lshlrev_b32 v18, 7, v11")
        em.op(f"s_lshr_b32 s4, s5, 6")
        em.op(f"s_add_u32 s4, s4, s{sWave}")
        em.op("s_lshl_b32 s4, s4, 15")
        em.vmop(f"buffer_load_dword v254, v18, s[{sX}:{sX+3}], s4 offen", "touch")

    def touch_w(em):
        em.op("v_lshlrev_b32 v18, 7, v11")
        em.op("s_lshr_b32 s4, s2, 3")
        em.op("s_lshl_b32 s4, s4, 2")
        em.op(f"s_add_u32 s4, s4, s{sWave}")
        em.op("s_lshl_b32 s4, s4, 13")
        em.op("s_sub_u32 s4, s4, s5")
        em.vmop(f"buffer_load_dword v253, v18, s[{sW}:{sW+3}], s4 offen", "touch")
        em.op("s_add_u32 s4, s4, 0x100000")
        em.vmop(f"buffer_load_dword v252, v18, s[{sW}:{sW+3}], s4 offen", "touch")
    if args.touch & 1:
        touch_x(em)
    if args.touch & 2:
        touch_w(em)
    prologue2(em)
    emit_now(em, wload(1))
    if not args.bnlate:
        bn_loads(em)
    emit_now(em, xchunk(1, range(4)))
    B = lambda k: k + 2
    Q = []
    if args.xlate:
        pre = [wload(2), wload(3)]
        for it in pre[:args.pre]:
            emit_now(em, it)
        for it in pre[args.pre:]:
            Q += it
        if args.bnlate:
            Q.append(F(bn_loads, "o", isload=True))
        for kk in range(12):
            u = kk + 4
            if u % 2 == 0:
                c = u // 2
                Q += xchunk(c, range(4), B(2 * c - 6) if c >= 4 else 0)
            if u == 15:
                Q += xstage(8, B(10))
            Q += wload(u, B(kk))
            if args.cpf and kk == args.cpf1:
                Q += code_prefetch("L_steady", False)
    else:
        pre = [wload(2), xchunk(2, range(4)), wload(3)]
        for it in pre[:args.pre]:
            emit_now(em, it)
        for it in pre[args.pre:]:
            Q += it
        for kk in range(12):
            c = (kk + 6) // 2
            if c <= 7:
                Q += xchunk(c, (0, 1) if kk % 2 == 0 else (2, 3), B(2 * c - 6) if c >= 4 else 0)
            if kk + 4 == 15:
                Q += xstage(8, B(10))
            Q += wload(kk + 4, B(kk))
            if args.cpf and kk == args.cpf1:
                Q += code_prefetch("L_steady", False)
    Q += xstage(9, B(12)) + xstage(10, B(14))

    groups = []
    started = set()

    def mk(s, kk, taps=(0, 1, 2)):
        m = []
        for t in taps:
            o = s + 1 - t
            if o < 0 or o > 31:
                continue
            first = o not in started
            started.add(o)
            for db in range(2):
                m.append((accreg(o) + 4 * db, wreg(kk, t, db), first))
        g = Group(s, kk, m)
        g.idx = len(groups)
        groups.append(g)
        return g

    p1 = [Segment([mk(p, kk) for p in range(P)]) for kk in range(16)]
    pos = {s: Segment([mk(s, kk) for kk in range(16)]) for s in range(P, 31)}
    pos[31] = Segment([mk(31, kk, (2,)) for kk in range(16)] + [mk(31, kk, (1,)) for kk in range(16)])

    bn = bn_compute_items()
    nb = (len(bn) + args.bnk - 1) // args.bnk
    for kk in range(16):
        sg = p1[kk]
        if kk < 15:
            sg.streams.append(wstage_items(kk + 1, args.a_w, args.a_done))
        if args.bn0 <= kk < args.bnk + args.bn0:
            it, bn = bn[:nb], bn[nb:]
            sg.streams.append(it)
    assert not bn and args.bnk + args.bn0 <= 12

    it = wstage_items(0, 0, 0)
    if args.w0first:
        em.wait_vm(("xc", 0))
    emit_now(em, it[:-1])
    for g in groups[:args.PF]:
        issue_read(em, g)
    emit_now(em, it[-1:])
    if args.stamp:
        em.op("s_memtime s[50:51]")
        em.op("s_memrealtime s[58:59]")

    syncs = [s for s in range(P, 31) if s < args.sy0 or s % 2 == 0]
    nb0 = 16
    for st in range(11, LOOP0 + 6):
        first_ok = min(s for s in syncs if s >= max(st - 7, P))
        Q += xstage(st, nb0 + syncs.index(first_ok) + 1)
        if args.cpf and st == args.cpf2:
            Q += code_prefetch("L_loop", True)
        if args.cpf and st == 13:
            Q += code_prefetch("L_steady+16384", True)
    halves = [(o, h) for o in range(P - 2) for h in range(2)]
    for s in range(P, 32):
        ep = []
        pos[s].nh = 0
        for _ in range(args.hpp):
            if halves:
                o, h = halves.pop(0)
                ep += epilogue_ops(o, args, half=h, at=(args.a_ep if s == P else args.a_h))
                pos[s].nh += 1
        ep += epilogue_ops(s - 2, args, at=args.a_ep)
        sy = []
        if s in syncs:
            later = [x for x in syncs if x > s]
            need = later[0] if later else 31
            site = (s & 3) if s >= LOOP0 else None
            sy.append(F(lambda em, need=need, site=site: em.wait_vm(("x", need), site=site), "o", at=args.a_sync))
            sy.append(F(barrier, "x"))
        if s == 31:
            ep[0].at = 0
            ep += epilogue_ops(30, args, at=39)
        pos[s].streams = [sy, ep]
        if LOOP0 <= s < 31:
            nbar = nb0 + len([x for x in syncs if x <= s])
            pos[s].Q = xstage_loop(s, s + 6, nbar)
    assert not halves

    for kk in range(16):
        nxt = p1[kk + 1].groups if kk < 15 else pos[P].groups
        if args.fine == 1:
            em.op(f"s_memtime s[{68+2*kk}:{69+2*kk}]")
        emit_segment(em, p1[kk], nxt, args.PF, args.cap1, False, Q, args.qsep1)
    if args.fine == 1:
        em.op(f"s_memtime s[100:101]")
    if args.stamp:
        em.op("s_memtime s[52:53]")
        em.op("s_memrealtime s[60:61]")
    em.label("L_steady")
    em.xcost = args.xcost
    for s in range(P, LOOP0):
        if args.fine == 2:
            em.op(f"s_memtime s[{68+2*(s-P)}:{69+2*(s-P)}]")
        emit_segment(em, pos[s], pos[s + 1].groups, args.PF, 3 if pos[s].nh > 1 else args.cap, args.v1, Q, args.qsep, args.qmax0)
    assert not Q, len(Q)
    if args.fine == 2:
        em.op(f"s_memtime s[{68+2*(LOOP0-P)}:{69+2*(LOOP0-P)}]")
    if LOOP0 & 4:
        em.op(f"s_mov_b32 s{sMb}, s{sM0}")
        em.op(f"s_add_u32 s{sMa}, s{sM0}, 0x10000")
        em.op(f"v_swap_b32 v{vXr}, v{vXr2}")
    else:
        em.op(f"s_mov_b32 s{sMa}, s{sM0}")
        em.op(f"s_add_u32 s{sMb}, s{sM0}, 0x10000")
    em.op(f"s_mov_b32 s{sXo}, {(LOOP0+5)*1024}")
    em.op(f"s_mov_b32 s{sOo}, {(LOOP0-3)*1024}")
    em.op(f"s_mov_b32 s{sCnt}, 0")

    def seg(s):
        q = list(pos[s].Q)
        emit_segment(em, pos[s], pos[s + 1].groups, args.PF, args.cap, args.v1, q, args.qsep)
        assert not q

    def flip():
        em.op(f"v_swap_b32 v{vXr}, v{vXr2}")
        em.op(f"s_xor_b32 s{sMa}, s{sMa}, 0x10000")
        em.op(f"s_xor_b32 s{sMb}, s{sMb}, 0x10000")

    em.label("L_loop")
    if linear:
        for s in range(LOOP0, 31):
            em.loop_it = (s - LOOP0) // 4
            seg(s)
            if s % 4 == 3:
                flip()
    else:
        em.loop_it = 0
        lds_entry = list(em.lds)
        for s in range(LOOP0, LOOP0 + 3):
            seg(s)
        em.op(f"s_cmp_eq_u32 s{sCnt}, {(32-LOOP0)//4-1}")
        em.op("s_cbranch_scc1 L_tail")
        saved = (list(em.lds), list(em.vm))
        seg(LOOP0 + 3)
        flip()
        em.op(f"s_add_u32 s{sCnt}, s{sCnt}, 1")
        em.op("s_branch L_loop")
        assert [t[1] - 64 for t in em.lds] == [t[1] for t in lds_entry], (em.lds, lds_entry)
        em.label("L_tail")
        em.lds = [(t[0], t[1] + (28 - LOOP0) * 16) for t in saved[0]]
        em.vm = saved[1]
    em.loop_it = (31 - LOOP0) // 4
    if args.fine == 2:
        em.op(f"s_memtime s[{70+2*(LOOP0-P)}:{71+2*(LOOP0-P)}]")
    tail_segment(em, pos[31], args)
    em.op("s_nop 7")
    for f in epilogue_ops(31, args):
        if f.gapsep:
            em.op("s_nop 1")
        f.fn(em)
    if args.fine == 2:
        em.op(f"s_memtime s[{72+2*(LOOP0-P)}:{73+2*(LOOP0-P)}]")
    if args.stamp:
        em.op("s_waitcnt vmcnt(0) lgkmcnt(0)")
        em.op("s_memtime s[54:55]")
        em.op("s_memrealtime s[62:63]")
        em.op("s_waitcnt lgkmcnt(0)")
        em.op("s_lshl_b32 s3, s2, 3")
        em.op(f"s_add_u32 s3, s3, s{sWave}")
        em.op("s_lshl_b32 s3, s3, 6")
        em.op("v_mov_b32 v0, s3")
        for i in range(16):
            em.op(f"v_mov_b32 v{4+i}, s{48+i}")
        for i in range(4):
            em.op(f"global_store_dwordx4 v0, v[{4+4*i}:{7+4*i}], s[46:47] offset:{16*i}")
        if args.fine:
            em.op("v_add_u32 v0, 0x100000, v0")
            em.op("v_lshlrev_b32 v0, 1, v0")
            for i in range(17):
                em.op(f"v_mov_b32 v{4+i}, s{68+2*i}")
            for i in range(5):
                em.op(f"global_store_dwordx4 v0, v[{4+4*i}:{7+4*i}], s[46:47] offset:{16*i}")
    em.label("L_end")
    em.op("s_endpgm")
    em.label("L_code_end")
    return em


def main():
    ap = argparse.ArgumentParser()
    ap.add_argument("-o", default="standalone__batchnorm__sampling.s")
    ap.add_argument("--PF", type=int, default=3)
    ap.add_argument("--pre", type=int, default=1)
    ap.add_argument("--a_w", type=int, default=24)
    ap.add_argument("--a_done", type=int, default=43)
    ap.add_argument("--a_ep", type=int, default=8)
    ap.add_argument("--a_sync", type=int, default=1)
    ap.add_argument("--cap", type=int, default=2)
    ap.add_argument("--cap1", type=int, default=3)
    ap.add_argument("--qsep1", type=int, default=3)
    ap.add_argument("--qsep", type=int, default=2)
    ap.add_argument("--qmax", type=int, default=4)
    ap.add_argument("--bnk", type=int, default=6)
    ap.add_argument("--sy", type=int, default=2)
    ap.add_argument("--sy0", type=int, default=10)
    ap.add_argument("--v1", type=int, default=1)
    ap.add_argument("--rot", type=int, default=1)
    ap.add_argument("--stmod", type=str, default="")
    ap.add_argument("--cpf", type=int, default=1)
    ap.add_argument("--cpf1", type=int, default=6)
    ap.add_argument("--cpf2", type=int, default=21)
    ap.add_argument("--hpp", type=int, default=1)
    ap.add_argument("--touch", type=int, default=0)
    ap.add_argument("--xlate", type=int, default=1)
    ap.add_argument("--bnlate", type=int, default=1)
    ap.add_argument("--bn0", type=int, default=3)
    ap.add_argument("--w0first", type=int, default=0)
    ap.add_argument("--xcost", type=int, default=8)
    ap.add_argument("--xcost1", type=int, default=0)
    ap.add_argument("--a_h", type=int, default=0)
    ap.add_argument("--qmax0", type=int, default=6)
    ap.add_argument("--stamp", type=int, default=0)
    ap.add_argument("--fine", type=int, default=0)
    ap.add_argument("--dbg", type=str, default="")
    args = ap.parse_args()
    tr = build(args, linear=True)
    em = build(args, vm_override=tr.vm_sites)
    print("sites", tr.vm_sites, file=sys.stderr)
    out = HEADER
    out += '.amdgcn_target "amdgcn-amd-amdhsa--gfx950"\n.text\n'
    out += f".globl {NAME}\n.p2align 8\n.type {NAME},@function\n{NAME}:\n"
    lines = em.lines
    if args.dbg:
        i0 = min(i for i, l in enumerate(lines) if "v_mfma" in l)
        i1 = max(i for i, l in enumerate(lines) if "v_mfma" in l)
        body = lines[i0:i1]

        def drop(pred):
            nonlocal body
            body = [l for l in body if not pred(l)]
        if "b" in args.dbg: drop(lambda l: "s_barrier" in l)
        if "d" in args.dbg: drop(lambda l: " lds" in l and "buffer_load" in l)
        if "s" in args.dbg: drop(lambda l: "buffer_store" in l)
        if "e" in args.dbg: drop(lambda l: l.strip().startswith(("v_fma", "v_exp", "v_rcp", "v_mul", "v_cvt", "v_perm", "v_lshl", "v_and", "v_add", "v_sqrt")))
        if "T" in args.dbg: drop(lambda l: "_tr_" in l)
        if "v" in args.dbg: drop(lambda l: "vmcnt" in l)
        lines = lines[:i0] + body + lines[i1:]
    out += "\n".join(lines) + "\n"
    out += f""".section .rodata,"a"
.p2align 6
.amdhsa_kernel {NAME}
  .amdhsa_next_free_vgpr 512
  .amdhsa_next_free_sgpr 102
  .amdhsa_accum_offset 256
  .amdhsa_group_segment_fixed_size 0
  .amdhsa_kernarg_size 72
  .amdhsa_user_sgpr_count 2
  .amdhsa_user_sgpr_kernarg_segment_ptr 1
  .amdhsa_system_sgpr_workgroup_id_x 1
.end_amdhsa_kernel
"""
    open(args.o, "w").write(out)
    print("lines", len(em.lines), "dumps", em.dumps, file=sys.stderr)


if __name__ == "__main__":
    main()
```

```python
import sys, argparse
from gen2 import HEADER, NAME, Em, Group, Segment, vr, wreg

P = 8
R = [8, 16, 24, 32]
E = [40, 48, 56, 64, 72, 80]
XF = [88, 92, 96, 100]
SC, SH = 104, 112
TMP = [120, 121, 122, 123, 124, 125, 126, 127]
vWg, vWr0, vWr1, vXp, vXq = 123, 124, 125, 126, 127
vWr0b, vWr1b = 121, 122
vXr, vXr2, vO = 1, 2, 3
vXd = [4, 5, 6, 7]
BNR = 208
BNT = 224

sX, sW, sO = 8, 12, 16
sWave, sM0, sTmp, sC, sTmp2, sTmp3, sM0q = 20, 21, 23, 28, 29, 22, 26
sWc = [24, 25, 30, 31]
sMa, sMb, sXo, sOo, sCnt = 36, 37, 38, 39, 40
LOOP0 = 20
sXc = [32, 33, 34, 35]
WS = 65536
WB = 24576
WT = 8192


class F:
    def __init__(self, fn, kind="o", at=0, gapsep=0, need_bar=0, isload=False):
        self.fn, self.kind, self.at, self.gapsep, self.need_bar, self.isload = fn, kind, at, gapsep, need_bar, isload


def accreg(o):
    return E[o] if o <= P - 3 else R[o & 3]


def issue_read(em, g):
    if g.s < P:
        a = ((g.kk >> 1) & 3) * 16384 + g.s * 2048 + (g.kk & 1) * 512
        em.ldsop(f"ds_read_b128 {vr(XF[g.idx & 3])}, v{vXp} offset:{a}", ("xf", g.idx))
    else:
        a = (g.s & 7) * 16384 + (g.kk >> 2) * 4096 + (g.kk & 3) * 256
        base = vXr2 if a >= 65536 else vXr
        if em.loop_it is not None:
            base = vXr if (g.s - LOOP0) // 4 == em.loop_it else vXr2
        em.ldsop(f"ds_read_b128 {vr(XF[g.idx & 3])}, v{base} offset:{a & 65535}", ("xf", g.idx))


def epilogue_ops(o, args, at=0, half=None):
    a = accreg(o)
    rs = range(8) if half is None else range(4 * half, 4 * half + 4)
    L = []
    for r in rs:
        L.append(F(lambda em, r=r: em.op(f"v_fma_f32 v{a+r}, v{a+r}, v{SC+r}, v{SH+r}"), "v"))
    for r in rs:
        L.append(F(lambda em, r=r: em.op(f"v_exp_f32 v{TMP[r]}, v{a+r}"), "t"))
    for r in rs:
        L.append(F(lambda em, r=r: em.op(f"v_fma_f32 v{TMP[r]}, v{TMP[r]}, s{sC}, s{sC}"), "v"))
    for r in rs:
        L.append(F(lambda em, r=r: em.op(f"v_rcp_f32 v{TMP[r]}, v{TMP[r]}"), "t"))
    for r in rs:
        L.append(F(lambda em, r=r: em.op(f"v_mul_f32 v{a+r}, v{a+r}, v{TMP[r]}"), "v"))
    for r in rs[::2]:
        L.append(F(lambda em, r=r: em.op(f"v_cvt_pk_bf16_f32 v{a+r//2}, v{a+r}, v{a+r+1}"), "v"))
    if half in (None, 1):
        L.append(F(lambda em: em.op(f"v_permlane16_swap_b32 v{a}, v{a+2}"), "v", gapsep=2))
        L.append(F(lambda em: em.op(f"v_permlane16_swap_b32 v{a+1}, v{a+3}"), "v", gapsep=1))
        if o + 2 >= LOOP0 and o < 30:
            L.append(F(lambda em: em.op(f"s_add_u32 s{sOo}, s{sOo}, 1024"), "o"))
            L.append(F(lambda em: em.vmop(f"buffer_store_dwordx4 {vr(a)}, v{vO}, s[{sO}:{sO+3}], s{sOo} offen{args.stmod}", ("st", o)), "x", gapsep=1))
        else:
            L.append(F(lambda em: em.op(f"s_mov_b32 s{sTmp3}, {o*1024}"), "o"))
            L.append(F(lambda em: em.vmop(f"buffer_store_dwordx4 {vr(a)}, v{vO}, s[{sO}:{sO+3}], s{sTmp3} offen{args.stmod}", ("st", o)), "x", gapsep=1))
    L[0].at = at
    return L


def barrier(em):
    em.op("s_barrier")
    em.nbar += 1


def emit_segment(em, seg, nxt, PF, cap, v1, Q=None, qsep=4, qmax=99):
    allg = seg.groups + nxt
    streams = [list(s) for s in seg.streams]
    lastgap = [-99] * len(streams)
    gap = 0
    ngaps = sum(len(g.mfmas) for g in seg.groups)
    qn = 0
    for i, g in enumerate(seg.groups):
        if i + PF < len(allg):
            issue_read(em, allg[i + PF])
        em.wait_lds(("xf", g.idx))
        nm = len(g.mfmas)
        for j, (acc, w, first) in enumerate(g.mfmas):
            c = "0" if first else vr(acc)
            em.op(f"v_mfma_f32_16x16x32_bf16 {vr(acc)}, {w}, {vr(XF[g.idx & 3])}, {c}")
            em.gapno += 1
            n_left = max(cap - 2, 0) if j == nm - 1 else cap
            v_left = 8
            final = gap == ngaps - 1
            if final:
                n_left = 10**6
                nd = sum(len(st) for st in streams)
                if nd:
                    em.dumps.append((g.s, g.kk, nd))
            progress = True
            while progress and n_left > 0:
                progress = False
                if Q and Q[0].isload and em.gapno != em.lastm0 and not final and qn < qmax and v_left >= em.xcost and em.qfirst:
                    f = Q.pop(0)
                    f.fn(em)
                    em.lastload = em.gapno
                    v_left -= em.xcost
                    qn += 1
                    n_left -= 1
                    progress = True
                    continue
                for si, st in enumerate(streams):
                    if not st or n_left <= 0:
                        continue
                    f = st[0]
                    if not final:
                        if f.at > gap or gap < lastgap[si] + f.gapsep:
                            continue
                        cost = {"v": 8 if v1 else 4, "t": 8, "o": 0, "x": em.xcost}[f.kind]
                        if cost > v_left:
                            continue
                        v_left -= cost
                    else:
                        if f.gapsep or f.kind == "v":
                            em.op("s_nop 1")
                    f.fn(em)
                    st.pop(0)
                    lastgap[si] = gap
                    n_left -= 1
                    progress = True
                if Q and n_left > 0 and not final and qn < qmax:
                    f = Q[0]
                    ok = em.nbar >= f.need_bar
                    if f.gapsep and em.gapno < em.lastload + qsep:
                        ok = False
                    if f.isload and em.gapno == em.lastm0:
                        ok = False
                    if f.isload and v_left < em.xcost:
                        ok = False
                    if ok:
                        f.fn(em)
                        Q.pop(0)
                        if f.isload:
                            em.lastload = em.gapno
                            v_left -= em.xcost
                            qn += 1
                        else:
                            em.lastm0 = em.gapno
                        n_left -= 1
                        progress = True
            gap += 1
    for st in streams:
        assert not st


def tail_segment(em, seg, args):
    g0 = seg.groups[0].idx
    regs = {}
    for kk in range(16):
        regs[kk] = XF[(g0 + kk) & 3] if kk < 4 else E[0] + 4 * (kk - 4)
    for kk in range(args.PF, 16):
        a = 3 * 16384 + (kk >> 2) * 4096 + (kk & 3) * 256
        em.ldsop(f"ds_read_b128 {vr(regs[kk])}, v{vXr} offset:{a}", ("xf", g0 + kk))
    st = list(seg.streams[1])
    last = -99
    gap = 0
    for i, g in enumerate(seg.groups):
        if i < 16:
            em.wait_lds(("xf", g0 + i))
        for (acc, w, first) in g.mfmas:
            em.op(f"v_mfma_f32_16x16x32_bf16 {vr(acc)}, {w}, {vr(regs[g.kk])}, {vr(acc)}")
            v_left = 8
            while st and st[0].at <= gap and gap >= last + st[0].gapsep:
                cost = {"v": 4, "t": 8, "o": 0, "x": 8}[st[0].kind]
                if cost > v_left:
                    break
                v_left -= cost
                st.pop(0).fn(em)
                last = gap
            gap += 1
    if st:
        em.dumps.append(("tail", len(st)))
    for f in st:
        if f.gapsep:
            em.op("s_nop 1")
        f.fn(em)


def dma(srd, voff, m0expr, soffexpr, tag, need_bar):
    def pre(em):
        em.op(f"s_add_u32 m0, {m0expr}")
        if soffexpr:
            em.op(soffexpr)
    return [F(pre, "o", gapsep=1, need_bar=need_bar),
            F(lambda em: em.vmop(f"buffer_load_dwordx4 v{voff}, s[{srd}:{srd+3}], s{sTmp2} offen lds", tag), "o", isload=True)]


def xchunk(c, ii, need_bar=0):
    L = []
    for i in ii:
        L += dma(sX, vXq, f"s{sM0q}, {(c & 3)*16384 + i*2048}",
                 f"s_add_u32 s{sTmp2}, s{sXc[c>>1]}, {i*1024 + (c&1)*128}", ("xc", c), need_bar)
    return L


def xstage(st, need_bar=0):
    L = []
    for c4 in range(4):
        L += dma(sX, vXd[c4], f"s{sM0}, {(st & 7)*16384 + c4*4096}",
                 f"s_mov_b32 s{sTmp2}, {st*1024}" if c4 == 0 else None, ("x", st), need_bar)
    return L


def xstage_loop(s, st, need_bar=0):
    same = (st - LOOP0) // 4 % 2 == (s - LOOP0) // 4 % 2
    sm = sMa if same else sMb
    L = []

    def adv(em):
        em.op(f"s_add_u32 s{sXo}, s{sXo}, 1024")
        em.op(f"s_cmp_lt_u32 s{sXo}, 32768")
        em.op(f"s_cselect_b32 s{sTmp2}, s{sXo}, 0x100000")
    L.append(F(adv, "o", need_bar=need_bar))
    for c4 in range(4):
        L += dma(sX, vXd[c4], f"s{sm}, {(st & 3)*16384 + c4*4096}", None, ("x", st), need_bar)
    return L


def code_prefetch(label, lds):
    if lds:
        def pre(em):
            em.op(f"s_add_u32 m0, s{sM0}, 131072")
            em.op(f"s_mov_b32 s{sTmp2}, {label}-L_pc")
        return [F(pre, "o", gapsep=1),
                F(lambda em: em.vmop(f"buffer_load_dword v0, s[64:67], s{sTmp2} offen lds", "cpf"), "o", isload=True)]
    return [F(lambda em: em.op(f"s_mov_b32 s{sTmp2}, {label}-L_pc"), "o", gapsep=1),
            F(lambda em: em.vmop(f"buffer_load_dword v120, v0, s[64:67], s{sTmp2} offen", "cpf"), "o", isload=True)]


def wload(kk, need_bar=0):
    L = []
    for t in range(3):
        for h in range(2):
            L += dma(sW, vWg, f"s{sM0}, {WS + (kk & 3)*WB + t*WT + h*4096}",
                     f"s_add_u32 s{sTmp2}, s{sWc[kk>>2]}, {t*524288 + (kk&3)*32768 + h*16384}", ("w", kk), need_bar)
    return L


def bn_loads(em):
    for k, sp in enumerate((36, 38, 40, 42)):
        em.vmop(f"global_load_dwordx2 v[{BNR+4*k}:{BNR+4*k+1}], v{BNT}, s[{sp}:{sp+1}]", "bn")
        em.vmop(f"global_load_dwordx2 v[{BNR+4*k+2}:{BNR+4*k+3}], v{BNT}, s[{sp}:{sp+1}] offset:32", "bn")


def bn_compute_items():
    L = [F(lambda em: em.wait_vm("bn"), "o")]
    v = lambda s: L.append(F(lambda em: em.op(s), "v"))
    t = lambda s: L.append(F(lambda em: em.op(s), "t"))
    M, G, PK = BNT, BNT + 8, BNT + 16
    raw = lambda k, i: BNR + 4 * k + i
    for i in range(4):
        v(f"v_lshlrev_b32 v{SC+2*i}, 16, v{raw(1,i)}")
        v(f"v_and_b32 v{SC+2*i+1}, 0xffff0000, v{raw(1,i)}")

    def rnd():
        for i in range(4):
            v(f"v_cvt_pk_bf16_f32 v{PK+i}, v{SC+2*i}, v{SC+2*i+1}")
        for i in range(4):
            v(f"v_lshlrev_b32 v{SC+2*i}, 16, v{PK+i}")
            v(f"v_and_b32 v{SC+2*i+1}, 0xffff0000, v{PK+i}")
    for r in range(8):
        v(f"v_add_f32 v{SC+r}, 0x3727c5ac, v{SC+r}")
    rnd()
    for r in range(8):
        t(f"v_sqrt_f32 v{SC+r}, v{SC+r}")
    for i in range(4):
        v(f"v_lshlrev_b32 v{G+2*i}, 16, v{raw(2,i)}")
        v(f"v_and_b32 v{G+2*i+1}, 0xffff0000, v{raw(2,i)}")
    rnd()
    for r in range(8):
        t(f"v_rcp_f32 v{SC+r}, v{SC+r}")
    for i in range(4):
        v(f"v_lshlrev_b32 v{M+2*i}, 16, v{raw(0,i)}")
        v(f"v_and_b32 v{M+2*i+1}, 0xffff0000, v{raw(0,i)}")
    rnd()
    for r in range(8):
        v(f"v_mul_f32 v{SC+r}, v{SC+r}, v{G+r}")
    for i in range(4):
        v(f"v_lshlrev_b32 v{SH+2*i}, 16, v{raw(3,i)}")
        v(f"v_and_b32 v{SH+2*i+1}, 0xffff0000, v{raw(3,i)}")
    rnd()
    for r in range(8):
        v(f"v_fma_f32 v{SH+r}, -v{M+r}, v{SC+r}, v{SH+r}")
    for r in range(8):
        v(f"v_mul_f32 v{SC+r}, s{sC}, v{SC+r}")
    for r in range(8):
        v(f"v_mul_f32 v{SH+r}, s{sC}, v{SH+r}")
    return L


def wstage_items(kk, a_w, a_done):
    b = (kk & 1) * WB
    rd = (vWr0b, vWr1b) if kk & 2 else (vWr0, vWr1)
    L = [F(lambda em: em.wait_vm(("w", kk)), "o", at=a_w),
         F(barrier, "o")]
    for t in range(3):
        for db in range(2):
            for h in range(2):
                off = b + t * WT + h * 1024
                L.append(F(lambda em, t=t, db=db, h=h, off=off: em.ldsop(
                    f"ds_read_b64_tr_b16 {wreg(kk,t,db,2*h,2)}, v{rd[db]} offset:{off}", ("wr", kk)), "o", gapsep=1))
    L.append(F(lambda em: em.wait_lds(("wr", kk)), "o", at=a_done))
    return L


def emit_now(em, items):
    for f in items:
        if f.isload:
            em.op("s_nop 0")
        f.fn(em)


def prologue(em, args):
    em.op("s_cmp_ge_u32 s2, 256")
    em.op("s_cbranch_scc1 L_end")
    em.op("s_load_dwordx8 s[32:39], s[0:1], 0")
    em.op("s_load_dwordx4 s[40:43], s[0:1], 32")
    em.op("s_load_dwordx2 s[44:45], s[0:1], 48")
    if args.stamp:
        em.op("s_load_dwordx2 s[46:47], s[0:1], 64")
        em.op("s_memtime s[48:49]")
        em.op("s_memrealtime s[56:57]")
    if args.cpf:
        em.op("s_getpc_b64 s[64:65]")
        em.label("L_pc")
        em.op("s_and_b32 s65, s65, 0xffff")
        em.op("s_mov_b32 s66, L_code_end-L_pc")
        em.op("s_mov_b32 s67, 0x00020000")
    em.op("v_lshrrev_b32 v12, 6, v0")
    em.op("v_and_b32 v11, 63, v0")
    em.op("v_lshlrev_b32 v0, 6, v0")
    if args.cpf:
        em.vmop("buffer_load_dword v255, v0, s[64:67], 0 offen", "cpf")
    em.op(f"v_readfirstlane_b32 s{sWave}, v12")
    em.op("s_and_b32 s3, s2, 7")
    em.op("s_lshr_b32 s4, s2, 3")
    em.op("s_and_b32 s5, s4, 3")
    em.op("s_lshr_b32 s4, s4, 2")
    if args.rot == 1:
        em.op("s_add_u32 s6, s4, s3")
        em.op("s_and_b32 s6, s6, 3")
    elif args.rot == 2:
        em.op("s_and_b32 s6, s3, 3")
    elif args.rot == 3:
        em.op("s_lshl_b32 s6, s4, 1")
        em.op("s_add_u32 s6, s6, s3")
        em.op("s_and_b32 s6, s6, 3")
    elif args.rot == 4:
        em.op("s_lshr_b32 s6, s3, 1")
    else:
        em.op("s_mov_b32 s6, 0")
    em.op("s_lshl_b32 s3, s3, 3")
    em.op("s_add_u32 s3, s3, s4")
    em.op("s_lshl_b32 s3, s3, 19")
    em.op("s_lshl_b32 s5, s5, 8")
    for c4 in range(4):
        em.op(f"s_add_u32 s7, s6, {c4}")
        em.op("s_and_b32 s7, s7, 3")
        em.op(f"s_lshl_b32 s{sWc[c4]}, s7, 17")
    em.op("v_and_b32 v13, 15, v11")
    em.op("v_lshrrev_b32 v14, 4, v11")
    em.op(f"s_and_b32 s7, s{sWave}, 1")
    em.op("s_mul_i32 s4, s7, 3")
    em.op("v_and_b32 v17, 3, v11")
    em.op("v_xor_b32 v16, s4, v17")
    em.op("v_lshlrev_b32 v16, 4, v16")
    em.op("v_lshrrev_b32 v15, 5, v11")
    em.op("v_lshl_add_u32 v16, v15, 6, v16")
    em.op("v_bfe_u32 v15, v11, 2, 3")
    em.op("v_lshl_add_u32 v16, v15, 15, v16")
    em.op("s_lshl_b32 s4, s7, 18")
    em.op(f"v_add_u32 v{vXq}, s4, v16")
    em.op(f"s_lshr_b32 s4, s{sWave}, 1")
    em.op(f"s_lshl_b32 s{sM0q}, s4, 13")
    em.op("s_lshl_b32 s7, s7, 10")
    em.op(f"s_add_u32 s{sM0q}, s{sM0q}, s7")
    em.op("s_lshl_b32 s27, s4, 12")
    em.op("s_lshl_b32 s4, s4, 2")
    em.op("v_add_u32 v16, s4, v14")
    em.op("v_lshrrev_b32 v15, 1, v13")
    em.op("v_xor_b32 v16, v16, v15")
    em.op("v_lshlrev_b32 v16, 5, v16")
    em.op("v_and_b32 v15, 1, v13")
    em.op("v_lshl_add_u32 v16, v15, 4, v16")
    em.op("v_lshl_add_u32 v16, v14, 10, v16")
    em.op(f"s_lshl_b32 s7, s{sWave}, 12")
    em.op(f"v_add_u32 v{vWg}, s7, v16")
    em.op(f"s_lshl_b32 s{sM0}, s{sWave}, 10")
    em.op(f"s_mov_b32 s{sC}, 0xbfb8aa3b")
    em.op("s_waitcnt lgkmcnt(0)")
    em.op(f"s_add_u32 s{sX}, s32, s3")
    em.op(f"s_addc_u32 s{sX+1}, s33, 0")
    em.op(f"s_mov_b32 s{sX+2}, 524288")
    em.op(f"s_mov_b32 s{sX+3}, 0x00020000")
    em.op(f"s_add_u32 s{sW}, s34, s5")
    em.op(f"s_addc_u32 s{sW+1}, s35, 0")
    em.op(f"s_sub_u32 s{sW+2}, 1572864, s5")
    em.op(f"s_mov_b32 s{sW+3}, 0x00020000")
    for c4 in range(4):
        em.op(f"s_lshr_b32 s4, s{sWc[c4]}, 9")
        em.op(f"s_add_u32 s{sXc[c4]}, s4, s27")


def prologue2(em):
    em.op("s_add_u32 s3, s3, s5")
    em.op(f"s_add_u32 s{sO}, s44, s3")
    em.op(f"s_addc_u32 s{sO+1}, s45, 0")
    em.op(f"s_sub_u32 s{sO+2}, 524288, s5")
    em.op(f"s_mov_b32 s{sO+3}, 0x00020000")
    em.op(f"s_lshr_b32 s7, s{sWave}, 1")
    em.op("s_mul_i32 s7, s7, 3")
    em.op("v_xor_b32 v17, s7, v17")
    em.op("v_lshlrev_b32 v17, 4, v17")
    em.op("v_lshl_add_u32 v17, v14, 6, v17")
    em.op("v_bfe_u32 v16, v11, 2, 2")
    em.op("v_lshl_add_u32 v17, v16, 15, v17")
    em.op(f"s_lshl_b32 s7, s{sWave}, 17")
    em.op("v_add_u32 v17, s7, v17")
    for c4 in range(4):
        em.op(f"s_lshr_b32 s7, s{sWc[c4]}, 9")
        em.op(f"v_add_u32 v{vXd[c4]}, s7, v17")
    em.op(f"s_lshl_b32 s7, s{sWave}, 6")
    em.op("s_add_u32 s4, s7, s5")
    em.op("v_lshlrev_b32 v16, 3, v14")
    em.op(f"v_add_u32 v{BNT}, s4, v16")
    em.op("v_lshrrev_b32 v15, 3, v13")
    em.op("v_mul_u32_u24 v17, 3, v15")
    em.op("v_xor_b32 v17, v14, v17")
    em.op("v_lshlrev_b32 v17, 4, v17")
    em.op("v_lshl_add_u32 v18, v15, 10, v17")
    em.op("v_and_b32 v16, 7, v13")
    em.op(f"v_lshl_add_u32 v{vXp}, v16, 6, v18")
    em.op("v_lshrrev_b32 v16, 2, v13")
    em.op("v_lshl_add_u32 v17, v16, 10, v17")
    em.op("v_and_b32 v16, 3, v13")
    em.op(f"v_lshl_add_u32 v{vXr}, v16, 6, v17")
    em.op(f"v_add_u32 v{vXr2}, 0x10000, v{vXr}")
    em.op("v_lshrrev_b32 v16, 2, v13")
    em.op("v_and_b32 v17, 1, v14")
    em.op("v_lshl_add_u32 v17, v17, 2, v16")
    em.op(f"s_lshl_b32 s3, s{sWave}, 1")
    em.op("v_xor_b32 v17, s3, v17")
    em.op("v_lshlrev_b32 v17, 5, v17")
    em.op("v_lshl_add_u32 v16, v14, 3, v16")
    em.op("v_lshl_add_u32 v17, v16, 8, v17")
    em.op("v_and_b32 v16, 3, v11")
    em.op("v_lshl_add_u32 v17, v16, 3, v17")
    em.op(f"v_add_u32 v{vWr0}, {WS}, v17")
    em.op(f"v_xor_b32 v{vWr1}, 32, v{vWr0}")
    em.op(f"v_add_u32 v{vWr0b}, {2*WB}, v{vWr0}")
    em.op(f"v_add_u32 v{vWr1b}, {2*WB}, v{vWr1}")
    em.op("v_and_b32 v16, 1, v14")
    em.op("v_lshlrev_b32 v16, 5, v16")
    em.op("v_lshrrev_b32 v17, 1, v14")
    em.op("v_lshl_add_u32 v16, v17, 4, v16")
    em.op("v_lshl_add_u32 v16, v13, 15, v16")
    em.op(f"v_add_u32 v{vO}, s7, v16")


def build(args, vm_override=None, linear=False):
    em = Em()
    em.vm_override = vm_override
    em.loop_it = None
    em.xcost = args.xcost1
    em.qfirst = True
    em.nbar = 0
    em.gapno = 0
    em.lastload = -99
    em.lastm0 = -99
    prologue(em, args)
    emit_now(em, (wload(0) + xchunk(0, range(4)) + [F(lambda em: em.vm.append(("w", 0)) if False else None)]) if args.w0first else (xchunk(0, range(4)) + wload(0)))
    def touch_x(em):
        em.op("v_lshlrev_b32 v18, 7, v11")
        em.op(f"s_lshr_b32 s4, s5, 6")
        em.op(f"s_add_u32 s4, s4, s{sWave}")
        em.op("s_lshl_b32 s4, s4, 15")
        em.vmop(f"buffer_load_dword v254, v18, s[{sX}:{sX+3}], s4 offen", "touch")

    def touch_w(em):
        em.op("v_lshlrev_b32 v18, 7, v11")
        em.op("s_lshr_b32 s4, s2, 3")
        em.op("s_lshl_b32 s4, s4, 2")
        em.op(f"s_add_u32 s4, s4, s{sWave}")
        em.op("s_lshl_b32 s4, s4, 13")
        em.op("s_sub_u32 s4, s4, s5")
        em.vmop(f"buffer_load_dword v253, v18, s[{sW}:{sW+3}], s4 offen", "touch")
        em.op("s_add_u32 s4, s4, 0x100000")
        em.vmop(f"buffer_load_dword v252, v18, s[{sW}:{sW+3}], s4 offen", "touch")
    if args.touch & 1:
        touch_x(em)
    if args.touch & 2:
        touch_w(em)
    prologue2(em)
    emit_now(em, wload(1))
    if not args.bnlate:
        bn_loads(em)
    emit_now(em, xchunk(1, range(4)))
    B = lambda k: k + 2
    Q = []
    if args.xlate:
        pre = [wload(2), wload(3)]
        for it in pre[:args.pre]:
            emit_now(em, it)
        for it in pre[args.pre:]:
            Q += it
        if args.bnlate:
            Q.append(F(bn_loads, "o", isload=True))
        for kk in range(12):
            u = kk + 4
            if u % 2 == 0:
                c = u // 2
                Q += xchunk(c, range(4), B(2 * c - 6) if c >= 4 else 0)
            if u == 15:
                Q += xstage(8, B(10))
            Q += wload(u, B(kk))
            if args.cpf and kk == args.cpf1:
                Q += code_prefetch("L_steady", False)
    else:
        pre = [wload(2), xchunk(2, range(4)), wload(3)]
        for it in pre[:args.pre]:
            emit_now(em, it)
        for it in pre[args.pre:]:
            Q += it
        for kk in range(12):
            c = (kk + 6) // 2
            if c <= 7:
                Q += xchunk(c, (0, 1) if kk % 2 == 0 else (2, 3), B(2 * c - 6) if c >= 4 else 0)
            if kk + 4 == 15:
                Q += xstage(8, B(10))
            Q += wload(kk + 4, B(kk))
            if args.cpf and kk == args.cpf1:
                Q += code_prefetch("L_steady", False)
    Q += xstage(9, B(12)) + xstage(10, B(14))

    groups = []
    started = set()

    def mk(s, kk, taps=(0, 1, 2)):
        m = []
        for t in taps:
            o = s + 1 - t
            if o < 0 or o > 31:
                continue
            first = o not in started
            started.add(o)
            for db in range(2):
                m.append((accreg(o) + 4 * db, wreg(kk, t, db), first))
        g = Group(s, kk, m)
        g.idx = len(groups)
        groups.append(g)
        return g

    p1 = [Segment([mk(p, kk) for p in range(P)]) for kk in range(16)]
    pos = {s: Segment([mk(s, kk) for kk in range(16)]) for s in range(P, 31)}
    pos[31] = Segment([mk(31, kk, (2,)) for kk in range(16)] + [mk(31, kk, (1,)) for kk in range(16)])

    bn = bn_compute_items()
    nb = (len(bn) + args.bnk - 1) // args.bnk
    for kk in range(16):
        sg = p1[kk]
        if kk < 15:
            sg.streams.append(wstage_items(kk + 1, args.a_w, args.a_done))
        if args.bn0 <= kk < args.bnk + args.bn0:
            it, bn = bn[:nb], bn[nb:]
            sg.streams.append(it)
    assert not bn and args.bnk + args.bn0 <= 12

    it = wstage_items(0, 0, 0)
    if args.w0first:
        em.wait_vm(("xc", 0))
    emit_now(em, it[:-1])
    for g in groups[:args.PF]:
        issue_read(em, g)
    emit_now(em, it[-1:])
    if args.stamp:
        em.op("s_memtime s[50:51]")
        em.op("s_memrealtime s[58:59]")

    syncs = [s for s in range(P, 31) if s < args.sy0 or s % 2 == 0]
    nb0 = 16
    for st in range(11, LOOP0 + 6):
        first_ok = min(s for s in syncs if s >= max(st - 7, P))
        Q += xstage(st, nb0 + syncs.index(first_ok) + 1)
        if args.cpf and st == args.cpf2:
            Q += code_prefetch("L_loop", True)
        if args.cpf and st == 13:
            Q += code_prefetch("L_steady+16384", True)
    halves = [(o, h) for o in range(P - 2) for h in range(2)]
    for s in range(P, 32):
        ep = []
        pos[s].nh = 0
        for _ in range(args.hpp):
            if halves:
                o, h = halves.pop(0)
                ep += epilogue_ops(o, args, half=h, at=(args.a_ep if s == P else args.a_h))
                pos[s].nh += 1
        ep += epilogue_ops(s - 2, args, at=args.a_ep)
        sy = []
        if s in syncs:
            later = [x for x in syncs if x > s]
            need = later[0] if later else 31
            site = (s & 3) if s >= LOOP0 else None
            sy.append(F(lambda em, need=need, site=site: em.wait_vm(("x", need), site=site), "o", at=args.a_sync))
            sy.append(F(barrier, "x"))
        if s == 31:
            ep[0].at = 0
            ep += epilogue_ops(30, args, at=39)
        pos[s].streams = [sy, ep]
        if LOOP0 <= s < 31:
            nbar = nb0 + len([x for x in syncs if x <= s])
            pos[s].Q = xstage_loop(s, s + 6, nbar)
    assert not halves

    for kk in range(16):
        nxt = p1[kk + 1].groups if kk < 15 else pos[P].groups
        if args.fine == 1:
            em.op(f"s_memtime s[{68+2*kk}:{69+2*kk}]")
        emit_segment(em, p1[kk], nxt, args.PF, args.cap1, False, Q, args.qsep1)
    if args.fine == 1:
        em.op(f"s_memtime s[100:101]")
    if args.stamp:
        em.op("s_memtime s[52:53]")
        em.op("s_memrealtime s[60:61]")
    em.label("L_steady")
    em.xcost = args.xcost
    for s in range(P, LOOP0):
        if args.fine == 2:
            em.op(f"s_memtime s[{68+2*(s-P)}:{69+2*(s-P)}]")
        emit_segment(em, pos[s], pos[s + 1].groups, args.PF, 3 if pos[s].nh > 1 else args.cap, args.v1, Q, args.qsep, args.qmax0)
    assert not Q, len(Q)
    if args.fine == 2:
        em.op(f"s_memtime s[{68+2*(LOOP0-P)}:{69+2*(LOOP0-P)}]")
    if LOOP0 & 4:
        em.op(f"s_mov_b32 s{sMb}, s{sM0}")
        em.op(f"s_add_u32 s{sMa}, s{sM0}, 0x10000")
        em.op(f"v_swap_b32 v{vXr}, v{vXr2}")
    else:
        em.op(f"s_mov_b32 s{sMa}, s{sM0}")
        em.op(f"s_add_u32 s{sMb}, s{sM0}, 0x10000")
    em.op(f"s_mov_b32 s{sXo}, {(LOOP0+5)*1024}")
    em.op(f"s_mov_b32 s{sOo}, {(LOOP0-3)*1024}")
    em.op(f"s_mov_b32 s{sCnt}, 0")

    def seg(s):
        q = list(pos[s].Q)
        emit_segment(em, pos[s], pos[s + 1].groups, args.PF, args.cap, args.v1, q, args.qsep)
        assert not q

    def flip():
        em.op(f"v_swap_b32 v{vXr}, v{vXr2}")
        em.op(f"s_xor_b32 s{sMa}, s{sMa}, 0x10000")
        em.op(f"s_xor_b32 s{sMb}, s{sMb}, 0x10000")

    em.label("L_loop")
    if linear:
        for s in range(LOOP0, 31):
            em.loop_it = (s - LOOP0) // 4
            seg(s)
            if s % 4 == 3:
                flip()
    else:
        em.loop_it = 0
        lds_entry = list(em.lds)
        for s in range(LOOP0, LOOP0 + 3):
            seg(s)
        em.op(f"s_cmp_eq_u32 s{sCnt}, {(32-LOOP0)//4-1}")
        em.op("s_cbranch_scc1 L_tail")
        saved = (list(em.lds), list(em.vm))
        seg(LOOP0 + 3)
        flip()
        em.op(f"s_add_u32 s{sCnt}, s{sCnt}, 1")
        em.op("s_branch L_loop")
        assert [t[1] - 64 for t in em.lds] == [t[1] for t in lds_entry], (em.lds, lds_entry)
        em.label("L_tail")
        em.lds = [(t[0], t[1] + (28 - LOOP0) * 16) for t in saved[0]]
        em.vm = saved[1]
    em.loop_it = (31 - LOOP0) // 4
    if args.fine == 2:
        em.op(f"s_memtime s[{70+2*(LOOP0-P)}:{71+2*(LOOP0-P)}]")
    tail_segment(em, pos[31], args)
    em.op("s_nop 7")
    for f in epilogue_ops(31, args):
        if f.gapsep:
            em.op("s_nop 1")
        f.fn(em)
    if args.fine == 2:
        em.op(f"s_memtime s[{72+2*(LOOP0-P)}:{73+2*(LOOP0-P)}]")
    if args.extra:
        em.op(f"s_mov_b32 s{sCnt}, 0")
        em.label("L_extra")
        for kk in range(16):
            for t in range(3):
                for db in range(2):
                    a = E[t] + 4 * db
                    em.op(f"v_mfma_f32_16x16x32_bf16 {vr(a)}, {wreg(kk,t,db)}, {vr(XF[kk & 3])}, {vr(a)}")
        em.op(f"s_add_u32 s{sCnt}, s{sCnt}, 1")
        em.op(f"s_cmp_lt_u32 s{sCnt}, {args.extra}")
        em.op("s_cbranch_scc1 L_extra")
    if args.stamp:
        em.op("s_waitcnt vmcnt(0) lgkmcnt(0)")
        em.op("s_memtime s[54:55]")
        em.op("s_memrealtime s[62:63]")
        em.op("s_waitcnt lgkmcnt(0)")
        em.op("s_lshl_b32 s3, s2, 3")
        em.op(f"s_add_u32 s3, s3, s{sWave}")
        em.op("s_lshl_b32 s3, s3, 6")
        em.op("v_mov_b32 v0, s3")
        for i in range(16):
            em.op(f"v_mov_b32 v{4+i}, s{48+i}")
        for i in range(4):
            em.op(f"global_store_dwordx4 v0, v[{4+4*i}:{7+4*i}], s[46:47] offset:{16*i}")
        if args.fine:
            em.op("v_add_u32 v0, 0x100000, v0")
            em.op("v_lshlrev_b32 v0, 1, v0")
            for i in range(17):
                em.op(f"v_mov_b32 v{4+i}, s{68+2*i}")
            for i in range(5):
                em.op(f"global_store_dwordx4 v0, v[{4+4*i}:{7+4*i}], s[46:47] offset:{16*i}")
    em.label("L_end")
    em.op("s_endpgm")
    em.label("L_code_end")
    return em


def main():
    ap = argparse.ArgumentParser()
    ap.add_argument("-o", default="standalone__batchnorm__sampling.s")
    ap.add_argument("--PF", type=int, default=3)
    ap.add_argument("--pre", type=int, default=1)
    ap.add_argument("--a_w", type=int, default=24)
    ap.add_argument("--a_done", type=int, default=43)
    ap.add_argument("--a_ep", type=int, default=8)
    ap.add_argument("--a_sync", type=int, default=1)
    ap.add_argument("--cap", type=int, default=2)
    ap.add_argument("--cap1", type=int, default=3)
    ap.add_argument("--qsep1", type=int, default=3)
    ap.add_argument("--qsep", type=int, default=2)
    ap.add_argument("--qmax", type=int, default=4)
    ap.add_argument("--bnk", type=int, default=6)
    ap.add_argument("--sy", type=int, default=2)
    ap.add_argument("--sy0", type=int, default=10)
    ap.add_argument("--v1", type=int, default=1)
    ap.add_argument("--rot", type=int, default=1)
    ap.add_argument("--stmod", type=str, default="")
    ap.add_argument("--cpf", type=int, default=1)
    ap.add_argument("--cpf1", type=int, default=6)
    ap.add_argument("--cpf2", type=int, default=21)
    ap.add_argument("--hpp", type=int, default=1)
    ap.add_argument("--touch", type=int, default=0)
    ap.add_argument("--xlate", type=int, default=1)
    ap.add_argument("--extra", type=int, default=0)
    ap.add_argument("--bnlate", type=int, default=1)
    ap.add_argument("--bn0", type=int, default=3)
    ap.add_argument("--w0first", type=int, default=0)
    ap.add_argument("--xcost", type=int, default=8)
    ap.add_argument("--xcost1", type=int, default=0)
    ap.add_argument("--a_h", type=int, default=0)
    ap.add_argument("--qmax0", type=int, default=6)
    ap.add_argument("--stamp", type=int, default=0)
    ap.add_argument("--fine", type=int, default=0)
    ap.add_argument("--dbg", type=str, default="")
    args = ap.parse_args()
    tr = build(args, linear=True)
    em = build(args, vm_override=tr.vm_sites)
    print("sites", tr.vm_sites, file=sys.stderr)
    out = HEADER
    out += '.amdgcn_target "amdgcn-amd-amdhsa--gfx950"\n.text\n'
    out += f".globl {NAME}\n.p2align 8\n.type {NAME},@function\n{NAME}:\n"
    lines = em.lines
    if args.dbg:
        i0 = min(i for i, l in enumerate(lines) if "v_mfma" in l)
        i1 = max(i for i, l in enumerate(lines) if "v_mfma" in l)
        body = lines[i0:i1]

        def drop(pred):
            nonlocal body
            body = [l for l in body if not pred(l)]
        if "b" in args.dbg: drop(lambda l: "s_barrier" in l)
        if "d" in args.dbg: drop(lambda l: " lds" in l and "buffer_load" in l)
        if "s" in args.dbg: drop(lambda l: "buffer_store" in l)
        if "e" in args.dbg: drop(lambda l: l.strip().startswith(("v_fma", "v_exp", "v_rcp", "v_mul", "v_cvt", "v_perm", "v_lshl", "v_and", "v_add", "v_sqrt")))
        if "T" in args.dbg: drop(lambda l: "_tr_" in l)
        if "v" in args.dbg: drop(lambda l: "vmcnt" in l)
        lines = lines[:i0] + body + lines[i1:]
    out += "\n".join(lines) + "\n"
    out += f""".section .rodata,"a"
.p2align 6
.amdhsa_kernel {NAME}
  .amdhsa_next_free_vgpr 512
  .amdhsa_next_free_sgpr 102
  .amdhsa_accum_offset 256
  .amdhsa_group_segment_fixed_size 0
  .amdhsa_kernarg_size 72
  .amdhsa_user_sgpr_count 2
  .amdhsa_user_sgpr_kernarg_segment_ptr 1
  .amdhsa_system_sgpr_workgroup_id_x 1
.end_amdhsa_kernel
"""
    open(args.o, "w").write(out)
    print("lines", len(em.lines), "dumps", em.dumps, file=sys.stderr)


if __name__ == "__main__":
    main()
```

```python
import sys, argparse
from gen2 import HEADER, NAME, Em, Group, Segment, vr, wreg

P = 8
R = [8, 16, 24, 32]
E = [40, 48, 56, 64, 72, 80]
XF = [88, 92, 96, 100]
SC, SH = 104, 112
TMP = [120, 121, 122, 123, 124, 125, 126, 127]
vWg, vWr0, vWr1, vXp, vXq = 123, 124, 125, 126, 127
vWr0b, vWr1b = 121, 122
vXr, vXr2, vO = 1, 2, 3
vXd = [4, 5, 6, 7]
BNR = 208
BNT = 224

sX, sW, sO = 8, 12, 16
sWave, sM0, sTmp, sC, sTmp2, sTmp3, sM0q = 20, 21, 23, 28, 29, 22, 26
sWc = [24, 25, 30, 31]
sMa, sMb, sXo, sOo, sCnt = 36, 37, 38, 39, 40
LOOP0 = 20
sXc = [32, 33, 34, 35]
WS = 65536
WB = 24576
WT = 8192


class F:
    def __init__(self, fn, kind="o", at=0, gapsep=0, need_bar=0, isload=False):
        self.fn, self.kind, self.at, self.gapsep, self.need_bar, self.isload = fn, kind, at, gapsep, need_bar, isload


def accreg(o):
    return E[o] if o <= P - 3 else R[o & 3]


def issue_read(em, g):
    if g.s < P:
        a = ((g.kk >> 1) & 3) * 16384 + g.s * 2048 + (g.kk & 1) * 512
        em.ldsop(f"ds_read_b128 {vr(XF[g.idx & 3])}, v{vXp} offset:{a}", ("xf", g.idx))
    else:
        a = (g.s & 7) * 16384 + (g.kk >> 2) * 4096 + (g.kk & 3) * 256
        base = vXr2 if a >= 65536 else vXr
        if em.loop_it is not None:
            base = vXr if (g.s - LOOP0) // 4 == em.loop_it else vXr2
        em.ldsop(f"ds_read_b128 {vr(XF[g.idx & 3])}, v{base} offset:{a & 65535}", ("xf", g.idx))


def epilogue_ops(o, args, at=0, half=None):
    a = accreg(o)
    rs = range(8) if half is None else range(4 * half, 4 * half + 4)
    L = []
    for r in rs:
        L.append(F(lambda em, r=r: em.op(f"v_fma_f32 v{a+r}, v{a+r}, v{SC+r}, v{SH+r}"), "v"))
    for r in rs:
        L.append(F(lambda em, r=r: em.op(f"v_exp_f32 v{TMP[r]}, v{a+r}"), "t"))
    for r in rs:
        L.append(F(lambda em, r=r: em.op(f"v_fma_f32 v{TMP[r]}, v{TMP[r]}, s{sC}, s{sC}"), "v"))
    for r in rs:
        L.append(F(lambda em, r=r: em.op(f"v_rcp_f32 v{TMP[r]}, v{TMP[r]}"), "t"))
    for r in rs:
        L.append(F(lambda em, r=r: em.op(f"v_mul_f32 v{a+r}, v{a+r}, v{TMP[r]}"), "v"))
    for r in rs[::2]:
        L.append(F(lambda em, r=r: em.op(f"v_cvt_pk_bf16_f32 v{a+r//2}, v{a+r}, v{a+r+1}"), "v"))
    if half in (None, 1):
        L.append(F(lambda em: em.op(f"v_permlane16_swap_b32 v{a}, v{a+2}"), "v", gapsep=2))
        L.append(F(lambda em: em.op(f"v_permlane16_swap_b32 v{a+1}, v{a+3}"), "v", gapsep=1))
        if o + 2 >= LOOP0 and o < 30:
            L.append(F(lambda em: em.op(f"s_add_u32 s{sOo}, s{sOo}, 1024"), "o"))
            L.append(F(lambda em: em.vmop(f"buffer_store_dwordx4 {vr(a)}, v{vO}, s[{sO}:{sO+3}], s{sOo} offen{args.stmod}", ("st", o)), "x", gapsep=1))
        else:
            L.append(F(lambda em: em.op(f"s_mov_b32 s{sTmp3}, {o*1024}"), "o"))
            L.append(F(lambda em: em.vmop(f"buffer_store_dwordx4 {vr(a)}, v{vO}, s[{sO}:{sO+3}], s{sTmp3} offen{args.stmod}", ("st", o)), "x", gapsep=1))
    L[0].at = at
    return L


def barrier(em):
    em.op("s_barrier")
    em.nbar += 1


def emit_segment(em, seg, nxt, PF, cap, v1, Q=None, qsep=4, qmax=99):
    allg = seg.groups + nxt
    streams = [list(s) for s in seg.streams]
    lastgap = [-99] * len(streams)
    gap = 0
    ngaps = sum(len(g.mfmas) for g in seg.groups)
    qn = 0
    for i, g in enumerate(seg.groups):
        if i + PF < len(allg):
            issue_read(em, allg[i + PF])
        em.wait_lds(("xf", g.idx))
        nm = len(g.mfmas)
        for j, (acc, w, first) in enumerate(g.mfmas):
            c = "0" if first else vr(acc)
            em.op(f"v_mfma_f32_16x16x32_bf16 {vr(acc)}, {w}, {vr(XF[g.idx & 3])}, {c}")
            em.gapno += 1
            n_left = max(cap - 2, 0) if j == nm - 1 else cap
            v_left = 8
            final = gap == ngaps - 1
            if final:
                n_left = 10**6
                nd = sum(len(st) for st in streams)
                if nd:
                    em.dumps.append((g.s, g.kk, nd))
            progress = True
            while progress and n_left > 0:
                progress = False
                if Q and Q[0].isload and em.gapno != em.lastm0 and not final and qn < qmax and v_left >= em.xcost and em.qfirst:
                    f = Q.pop(0)
                    f.fn(em)
                    em.lastload = em.gapno
                    v_left -= em.xcost
                    qn += 1
                    n_left -= 1
                    progress = True
                    continue
                for si, st in enumerate(streams):
                    if not st or n_left <= 0:
                        continue
                    f = st[0]
                    if not final:
                        if f.at > gap or gap < lastgap[si] + f.gapsep:
                            continue
                        cost = {"v": 8 if v1 else 4, "t": 8, "o": 0, "x": em.xcost}[f.kind]
                        if cost > v_left:
                            continue
                        v_left -= cost
                    else:
                        if f.gapsep or f.kind == "v":
                            em.op("s_nop 1")
                    f.fn(em)
                    st.pop(0)
                    lastgap[si] = gap
                    n_left -= 1
                    progress = True
                if Q and n_left > 0 and not final and qn < qmax:
                    f = Q[0]
                    ok = em.nbar >= f.need_bar
                    if f.gapsep and em.gapno < em.lastload + qsep:
                        ok = False
                    if f.isload and em.gapno == em.lastm0:
                        ok = False
                    if f.isload and v_left < em.xcost:
                        ok = False
                    if ok:
                        f.fn(em)
                        Q.pop(0)
                        if f.isload:
                            em.lastload = em.gapno
                            v_left -= em.xcost
                            qn += 1
                        else:
                            em.lastm0 = em.gapno
                        n_left -= 1
                        progress = True
            gap += 1
    for st in streams:
        assert not st


def tail_segment(em, seg, args):
    g0 = seg.groups[0].idx
    regs = {}
    for kk in range(16):
        regs[kk] = XF[(g0 + kk) & 3] if kk < 4 else E[0] + 4 * (kk - 4)
    for kk in range(args.PF, 16):
        a = 3 * 16384 + (kk >> 2) * 4096 + (kk & 3) * 256
        em.ldsop(f"ds_read_b128 {vr(regs[kk])}, v{vXr} offset:{a}", ("xf", g0 + kk))
    st = list(seg.streams[1])
    last = -99
    gap = 0
    for i, g in enumerate(seg.groups):
        if i < 16:
            em.wait_lds(("xf", g0 + i))
        for (acc, w, first) in g.mfmas:
            em.op(f"v_mfma_f32_16x16x32_bf16 {vr(acc)}, {w}, {vr(regs[g.kk])}, {vr(acc)}")
            v_left = 8
            while st and st[0].at <= gap and gap >= last + st[0].gapsep:
                cost = {"v": 4, "t": 8, "o": 0, "x": 8}[st[0].kind]
                if cost > v_left:
                    break
                v_left -= cost
                st.pop(0).fn(em)
                last = gap
            gap += 1
    if st:
        em.dumps.append(("tail", len(st)))
    for f in st:
        if f.gapsep:
            em.op("s_nop 1")
        f.fn(em)


def dma(srd, voff, m0expr, soffexpr, tag, need_bar):
    def pre(em):
        em.op(f"s_add_u32 m0, {m0expr}")
        if soffexpr:
            em.op(soffexpr)
    return [F(pre, "o", gapsep=1, need_bar=need_bar),
            F(lambda em: em.vmop(f"buffer_load_dwordx4 v{voff}, s[{srd}:{srd+3}], s{sTmp2} offen lds", tag), "o", isload=True)]


def xchunk(c, ii, need_bar=0):
    L = []
    for i in ii:
        L += dma(sX, vXq, f"s{sM0q}, {(c & 3)*16384 + i*2048}",
                 f"s_add_u32 s{sTmp2}, s{sXc[c>>1]}, {i*1024 + (c&1)*128}", ("xc", c), need_bar)
    return L


def xstage(st, need_bar=0):
    L = []
    for c4 in range(4):
        L += dma(sX, vXd[c4], f"s{sM0}, {(st & 7)*16384 + c4*4096}",
                 f"s_mov_b32 s{sTmp2}, {st*1024}" if c4 == 0 else None, ("x", st), need_bar)
    return L


def xstage_loop(s, st, need_bar=0):
    same = (st - LOOP0) // 4 % 2 == (s - LOOP0) // 4 % 2
    sm = sMa if same else sMb
    L = []

    def adv(em):
        em.op(f"s_add_u32 s{sXo}, s{sXo}, 1024")
        em.op(f"s_cmp_lt_u32 s{sXo}, 32768")
        em.op(f"s_cselect_b32 s{sTmp2}, s{sXo}, 0x100000")
    L.append(F(adv, "o", need_bar=need_bar))
    for c4 in range(4):
        L += dma(sX, vXd[c4], f"s{sm}, {(st & 3)*16384 + c4*4096}", None, ("x", st), need_bar)
    return L


def code_prefetch(label, lds):
    if lds:
        def pre(em):
            em.op(f"s_add_u32 m0, s{sM0}, 131072")
            em.op(f"s_mov_b32 s{sTmp2}, {label}-L_pc")
        return [F(pre, "o", gapsep=1),
                F(lambda em: em.vmop(f"buffer_load_dword v0, s[64:67], s{sTmp2} offen lds", "cpf"), "o", isload=True)]
    return [F(lambda em: em.op(f"s_mov_b32 s{sTmp2}, {label}-L_pc"), "o", gapsep=1),
            F(lambda em: em.vmop(f"buffer_load_dword v120, v0, s[64:67], s{sTmp2} offen", "cpf"), "o", isload=True)]


def wload(kk, need_bar=0):
    L = []
    for t in range(3):
        for h in range(2):
            L += dma(sW, vWg, f"s{sM0}, {WS + (kk & 3)*WB + t*WT + h*4096}",
                     f"s_add_u32 s{sTmp2}, s{sWc[kk>>2]}, {t*524288 + (kk&3)*32768 + h*16384}", ("w", kk), need_bar)
    return L


def bn_loads(em):
    for k, sp in enumerate((36, 38, 40, 42)):
        em.vmop(f"global_load_dwordx2 v[{BNR+4*k}:{BNR+4*k+1}], v{BNT}, s[{sp}:{sp+1}]", "bn")
        em.vmop(f"global_load_dwordx2 v[{BNR+4*k+2}:{BNR+4*k+3}], v{BNT}, s[{sp}:{sp+1}] offset:32", "bn")


def bn_compute_items():
    L = [F(lambda em: em.wait_vm("bn"), "o")]
    v = lambda s: L.append(F(lambda em: em.op(s), "v"))
    t = lambda s: L.append(F(lambda em: em.op(s), "t"))
    M, G, PK = BNT, BNT + 8, BNT + 16
    raw = lambda k, i: BNR + 4 * k + i
    for i in range(4):
        v(f"v_lshlrev_b32 v{SC+2*i}, 16, v{raw(1,i)}")
        v(f"v_and_b32 v{SC+2*i+1}, 0xffff0000, v{raw(1,i)}")

    def rnd():
        for i in range(4):
            v(f"v_cvt_pk_bf16_f32 v{PK+i}, v{SC+2*i}, v{SC+2*i+1}")
        for i in range(4):
            v(f"v_lshlrev_b32 v{SC+2*i}, 16, v{PK+i}")
            v(f"v_and_b32 v{SC+2*i+1}, 0xffff0000, v{PK+i}")
    for r in range(8):
        v(f"v_add_f32 v{SC+r}, 0x3727c5ac, v{SC+r}")
    rnd()
    for r in range(8):
        t(f"v_sqrt_f32 v{SC+r}, v{SC+r}")
    for i in range(4):
        v(f"v_lshlrev_b32 v{G+2*i}, 16, v{raw(2,i)}")
        v(f"v_and_b32 v{G+2*i+1}, 0xffff0000, v{raw(2,i)}")
    rnd()
    for r in range(8):
        t(f"v_rcp_f32 v{SC+r}, v{SC+r}")
    for i in range(4):
        v(f"v_lshlrev_b32 v{M+2*i}, 16, v{raw(0,i)}")
        v(f"v_and_b32 v{M+2*i+1}, 0xffff0000, v{raw(0,i)}")
    rnd()
    for r in range(8):
        v(f"v_mul_f32 v{SC+r}, v{SC+r}, v{G+r}")
    for i in range(4):
        v(f"v_lshlrev_b32 v{SH+2*i}, 16, v{raw(3,i)}")
        v(f"v_and_b32 v{SH+2*i+1}, 0xffff0000, v{raw(3,i)}")
    rnd()
    for r in range(8):
        v(f"v_fma_f32 v{SH+r}, -v{M+r}, v{SC+r}, v{SH+r}")
    for r in range(8):
        v(f"v_mul_f32 v{SC+r}, s{sC}, v{SC+r}")
    for r in range(8):
        v(f"v_mul_f32 v{SH+r}, s{sC}, v{SH+r}")
    return L


def wstage_items(kk, a_w, a_done):
    b = (kk & 1) * WB
    rd = (vWr0b, vWr1b) if kk & 2 else (vWr0, vWr1)
    L = [F(lambda em: em.wait_vm(("w", kk)), "o", at=a_w),
         F(barrier, "o")]
    for t in range(3):
        for db in range(2):
            for h in range(2):
                off = b + t * WT + h * 1024
                L.append(F(lambda em, t=t, db=db, h=h, off=off: em.ldsop(
                    f"ds_read_b64_tr_b16 {wreg(kk,t,db,2*h,2)}, v{rd[db]} offset:{off}", ("wr", kk)), "o", gapsep=1))
    L.append(F(lambda em: em.wait_lds(("wr", kk)), "o", at=a_done))
    return L


def emit_now(em, items):
    for f in items:
        if f.isload:
            em.op("s_nop 0")
        f.fn(em)


def prologue(em, args):
    em.op("s_cmp_ge_u32 s2, 256")
    em.op("s_cbranch_scc1 L_end")
    em.op("s_load_dwordx8 s[32:39], s[0:1], 0")
    em.op("s_load_dwordx4 s[40:43], s[0:1], 32")
    em.op("s_load_dwordx2 s[44:45], s[0:1], 48")
    if args.stamp:
        em.op(f"s_load_dwordx2 s[46:47], s[0:1], {56 if args.stamp == 2 else 64}")
        em.op("s_memtime s[48:49]")
        em.op("s_memrealtime s[56:57]")
    if args.cpf:
        em.op("s_getpc_b64 s[64:65]")
        em.label("L_pc")
        em.op("s_and_b32 s65, s65, 0xffff")
        em.op("s_mov_b32 s66, L_code_end-L_pc")
        em.op("s_mov_b32 s67, 0x00020000")
    em.op("v_lshrrev_b32 v12, 6, v0")
    em.op("v_and_b32 v11, 63, v0")
    em.op("v_lshlrev_b32 v0, 6, v0")
    if args.cpf:
        em.vmop("buffer_load_dword v255, v0, s[64:67], 0 offen", "cpf")
    em.op(f"v_readfirstlane_b32 s{sWave}, v12")
    em.op("s_and_b32 s3, s2, 7")
    em.op("s_lshr_b32 s4, s2, 3")
    em.op("s_and_b32 s5, s4, 3")
    em.op("s_lshr_b32 s4, s4, 2")
    if args.rot == 1:
        em.op("s_add_u32 s6, s4, s3")
        em.op("s_and_b32 s6, s6, 3")
    elif args.rot == 2:
        em.op("s_and_b32 s6, s3, 3")
    elif args.rot == 3:
        em.op("s_lshl_b32 s6, s4, 1")
        em.op("s_add_u32 s6, s6, s3")
        em.op("s_and_b32 s6, s6, 3")
    elif args.rot == 4:
        em.op("s_lshr_b32 s6, s3, 1")
    else:
        em.op("s_mov_b32 s6, 0")
    em.op("s_lshl_b32 s3, s3, 3")
    em.op("s_add_u32 s3, s3, s4")
    em.op("s_lshl_b32 s3, s3, 19")
    em.op("s_lshl_b32 s5, s5, 8")
    for c4 in range(4):
        em.op(f"s_add_u32 s7, s6, {c4}")
        em.op("s_and_b32 s7, s7, 3")
        em.op(f"s_lshl_b32 s{sWc[c4]}, s7, 17")
    em.op("v_and_b32 v13, 15, v11")
    em.op("v_lshrrev_b32 v14, 4, v11")
    em.op(f"s_and_b32 s7, s{sWave}, 1")
    em.op("s_mul_i32 s4, s7, 3")
    em.op("v_and_b32 v17, 3, v11")
    em.op("v_xor_b32 v16, s4, v17")
    em.op("v_lshlrev_b32 v16, 4, v16")
    em.op("v_lshrrev_b32 v15, 5, v11")
    em.op("v_lshl_add_u32 v16, v15, 6, v16")
    em.op("v_bfe_u32 v15, v11, 2, 3")
    em.op("v_lshl_add_u32 v16, v15, 15, v16")
    em.op("s_lshl_b32 s4, s7, 18")
    em.op(f"v_add_u32 v{vXq}, s4, v16")
    em.op(f"s_lshr_b32 s4, s{sWave}, 1")
    em.op(f"s_lshl_b32 s{sM0q}, s4, 13")
    em.op("s_lshl_b32 s7, s7, 10")
    em.op(f"s_add_u32 s{sM0q}, s{sM0q}, s7")
    em.op("s_lshl_b32 s27, s4, 12")
    em.op("s_lshl_b32 s4, s4, 2")
    em.op("v_add_u32 v16, s4, v14")
    em.op("v_lshrrev_b32 v15, 1, v13")
    em.op("v_xor_b32 v16, v16, v15")
    em.op("v_lshlrev_b32 v16, 5, v16")
    em.op("v_and_b32 v15, 1, v13")
    em.op("v_lshl_add_u32 v16, v15, 4, v16")
    em.op("v_lshl_add_u32 v16, v14, 10, v16")
    em.op(f"s_lshl_b32 s7, s{sWave}, 12")
    em.op(f"v_add_u32 v{vWg}, s7, v16")
    em.op(f"s_lshl_b32 s{sM0}, s{sWave}, 10")
    em.op(f"s_mov_b32 s{sC}, 0xbfb8aa3b")
    em.op("s_waitcnt lgkmcnt(0)")
    em.op(f"s_add_u32 s{sX}, s32, s3")
    em.op(f"s_addc_u32 s{sX+1}, s33, 0")
    em.op(f"s_mov_b32 s{sX+2}, 524288")
    em.op(f"s_mov_b32 s{sX+3}, 0x00020000")
    em.op(f"s_add_u32 s{sW}, s34, s5")
    em.op(f"s_addc_u32 s{sW+1}, s35, 0")
    em.op(f"s_sub_u32 s{sW+2}, 1572864, s5")
    em.op(f"s_mov_b32 s{sW+3}, 0x00020000")
    for c4 in range(4):
        em.op(f"s_lshr_b32 s4, s{sWc[c4]}, 9")
        em.op(f"s_add_u32 s{sXc[c4]}, s4, s27")


def prologue2(em):
    em.op("s_add_u32 s3, s3, s5")
    em.op(f"s_add_u32 s{sO}, s44, s3")
    em.op(f"s_addc_u32 s{sO+1}, s45, 0")
    em.op(f"s_sub_u32 s{sO+2}, 524288, s5")
    em.op(f"s_mov_b32 s{sO+3}, 0x00020000")
    em.op(f"s_lshr_b32 s7, s{sWave}, 1")
    em.op("s_mul_i32 s7, s7, 3")
    em.op("v_xor_b32 v17, s7, v17")
    em.op("v_lshlrev_b32 v17, 4, v17")
    em.op("v_lshl_add_u32 v17, v14, 6, v17")
    em.op("v_bfe_u32 v16, v11, 2, 2")
    em.op("v_lshl_add_u32 v17, v16, 15, v17")
    em.op(f"s_lshl_b32 s7, s{sWave}, 17")
    em.op("v_add_u32 v17, s7, v17")
    for c4 in range(4):
        em.op(f"s_lshr_b32 s7, s{sWc[c4]}, 9")
        em.op(f"v_add_u32 v{vXd[c4]}, s7, v17")
    em.op(f"s_lshl_b32 s7, s{sWave}, 6")
    em.op("s_add_u32 s4, s7, s5")
    em.op("v_lshlrev_b32 v16, 3, v14")
    em.op(f"v_add_u32 v{BNT}, s4, v16")
    em.op("v_lshrrev_b32 v15, 3, v13")
    em.op("v_mul_u32_u24 v17, 3, v15")
    em.op("v_xor_b32 v17, v14, v17")
    em.op("v_lshlrev_b32 v17, 4, v17")
    em.op("v_lshl_add_u32 v18, v15, 10, v17")
    em.op("v_and_b32 v16, 7, v13")
    em.op(f"v_lshl_add_u32 v{vXp}, v16, 6, v18")
    em.op("v_lshrrev_b32 v16, 2, v13")
    em.op("v_lshl_add_u32 v17, v16, 10, v17")
    em.op("v_and_b32 v16, 3, v13")
    em.op(f"v_lshl_add_u32 v{vXr}, v16, 6, v17")
    em.op(f"v_add_u32 v{vXr2}, 0x10000, v{vXr}")
    em.op("v_lshrrev_b32 v16, 2, v13")
    em.op("v_and_b32 v17, 1, v14")
    em.op("v_lshl_add_u32 v17, v17, 2, v16")
    em.op(f"s_lshl_b32 s3, s{sWave}, 1")
    em.op("v_xor_b32 v17, s3, v17")
    em.op("v_lshlrev_b32 v17, 5, v17")
    em.op("v_lshl_add_u32 v16, v14, 3, v16")
    em.op("v_lshl_add_u32 v17, v16, 8, v17")
    em.op("v_and_b32 v16, 3, v11")
    em.op("v_lshl_add_u32 v17, v16, 3, v17")
    em.op(f"v_add_u32 v{vWr0}, {WS}, v17")
    em.op(f"v_xor_b32 v{vWr1}, 32, v{vWr0}")
    em.op(f"v_add_u32 v{vWr0b}, {2*WB}, v{vWr0}")
    em.op(f"v_add_u32 v{vWr1b}, {2*WB}, v{vWr1}")
    em.op("v_and_b32 v16, 1, v14")
    em.op("v_lshlrev_b32 v16, 5, v16")
    em.op("v_lshrrev_b32 v17, 1, v14")
    em.op("v_lshl_add_u32 v16, v17, 4, v16")
    em.op("v_lshl_add_u32 v16, v13, 15, v16")
    em.op(f"v_add_u32 v{vO}, s7, v16")


def build(args, vm_override=None, linear=False):
    em = Em()
    em.vm_override = vm_override
    em.loop_it = None
    em.xcost = args.xcost1
    em.qfirst = True
    em.nbar = 0
    em.gapno = 0
    em.lastload = -99
    em.lastm0 = -99
    prologue(em, args)
    emit_now(em, (wload(0) + xchunk(0, range(4)) + [F(lambda em: em.vm.append(("w", 0)) if False else None)]) if args.w0first else (xchunk(0, range(4)) + wload(0)))
    def touch_x(em):
        em.op("v_lshlrev_b32 v18, 7, v11")
        em.op(f"s_lshr_b32 s4, s5, 6")
        em.op(f"s_add_u32 s4, s4, s{sWave}")
        em.op("s_lshl_b32 s4, s4, 15")
        em.vmop(f"buffer_load_dword v254, v18, s[{sX}:{sX+3}], s4 offen", "touch")

    def touch_w(em):
        em.op("v_lshlrev_b32 v18, 7, v11")
        em.op("s_lshr_b32 s4, s2, 3")
        em.op("s_lshl_b32 s4, s4, 2")
        em.op(f"s_add_u32 s4, s4, s{sWave}")
        em.op("s_lshl_b32 s4, s4, 13")
        em.op("s_sub_u32 s4, s4, s5")
        em.vmop(f"buffer_load_dword v253, v18, s[{sW}:{sW+3}], s4 offen", "touch")
        em.op("s_add_u32 s4, s4, 0x100000")
        em.vmop(f"buffer_load_dword v252, v18, s[{sW}:{sW+3}], s4 offen", "touch")
    if args.touch & 1:
        touch_x(em)
    if args.touch & 2:
        touch_w(em)
    prologue2(em)
    emit_now(em, wload(1))
    if not args.bnlate:
        bn_loads(em)
    emit_now(em, xchunk(1, range(4)))
    B = lambda k: k + 2
    Q = []
    if args.xlate:
        pre = [wload(2), wload(3)]
        for it in pre[:args.pre]:
            emit_now(em, it)
        for it in pre[args.pre:]:
            Q += it
        if args.bnlate:
            Q.append(F(bn_loads, "o", isload=True))
        for kk in range(12):
            u = kk + 4
            if u % 2 == 0:
                c = u // 2
                Q += xchunk(c, range(4), B(2 * c - 6) if c >= 4 else 0)
            if u == 15:
                Q += xstage(8, B(10))
            Q += wload(u, B(kk))
            if args.cpf and kk == args.cpf1:
                Q += code_prefetch("L_steady", False)
    else:
        pre = [wload(2), xchunk(2, range(4)), wload(3)]
        for it in pre[:args.pre]:
            emit_now(em, it)
        for it in pre[args.pre:]:
            Q += it
        for kk in range(12):
            c = (kk + 6) // 2
            if c <= 7:
                Q += xchunk(c, (0, 1) if kk % 2 == 0 else (2, 3), B(2 * c - 6) if c >= 4 else 0)
            if kk + 4 == 15:
                Q += xstage(8, B(10))
            Q += wload(kk + 4, B(kk))
            if args.cpf and kk == args.cpf1:
                Q += code_prefetch("L_steady", False)
    Q += xstage(9, B(12)) + xstage(10, B(14))

    groups = []
    started = set()

    def mk(s, kk, taps=(0, 1, 2)):
        m = []
        for t in taps:
            o = s + 1 - t
            if o < 0 or o > 31:
                continue
            first = o not in started
            started.add(o)
            for db in range(2):
                m.append((accreg(o) + 4 * db, wreg(kk, t, db), first))
        g = Group(s, kk, m)
        g.idx = len(groups)
        groups.append(g)
        return g

    p1 = [Segment([mk(p, kk) for p in range(P)]) for kk in range(16)]
    pos = {s: Segment([mk(s, kk) for kk in range(16)]) for s in range(P, 31)}
    pos[31] = Segment([mk(31, kk, (2,)) for kk in range(16)] + [mk(31, kk, (1,)) for kk in range(16)])

    bn = bn_compute_items()
    nb = (len(bn) + args.bnk - 1) // args.bnk
    for kk in range(16):
        sg = p1[kk]
        if kk < 15:
            sg.streams.append(wstage_items(kk + 1, args.a_w, args.a_done))
        if args.bn0 <= kk < args.bnk + args.bn0:
            it, bn = bn[:nb], bn[nb:]
            sg.streams.append(it)
    assert not bn and args.bnk + args.bn0 <= 12

    it = wstage_items(0, 0, 0)
    if args.w0first:
        em.wait_vm(("xc", 0))
    emit_now(em, it[:-1])
    for g in groups[:args.PF]:
        issue_read(em, g)
    emit_now(em, it[-1:])
    if args.stamp:
        em.op("s_memtime s[50:51]")
        em.op("s_memrealtime s[58:59]")

    syncs = [s for s in range(P, 31) if s < args.sy0 or s % 2 == 0]
    nb0 = 16
    for st in range(11, LOOP0 + 6):
        first_ok = min(s for s in syncs if s >= max(st - 7, P))
        Q += xstage(st, nb0 + syncs.index(first_ok) + 1)
        if args.cpf and st == args.cpf2:
            Q += code_prefetch("L_loop", True)
        if args.cpf and st == 13:
            Q += code_prefetch("L_steady+16384", True)
    halves = [(o, h) for o in range(P - 2) for h in range(2)]
    for s in range(P, 32):
        ep = []
        pos[s].nh = 0
        for _ in range(args.hpp):
            if halves:
                o, h = halves.pop(0)
                ep += epilogue_ops(o, args, half=h, at=(args.a_ep if s == P else args.a_h))
                pos[s].nh += 1
        ep += epilogue_ops(s - 2, args, at=args.a_ep)
        sy = []
        if s in syncs:
            later = [x for x in syncs if x > s]
            need = later[0] if later else 31
            site = (s & 3) if s >= LOOP0 else None
            sy.append(F(lambda em, need=need, site=site: em.wait_vm(("x", need), site=site), "o", at=args.a_sync))
            sy.append(F(barrier, "x"))
        if s == 31:
            ep[0].at = 0
            ep += epilogue_ops(30, args, at=39)
        pos[s].streams = [sy, ep]
        if LOOP0 <= s < 31:
            nbar = nb0 + len([x for x in syncs if x <= s])
            pos[s].Q = xstage_loop(s, s + 6, nbar)
    assert not halves

    for kk in range(16):
        nxt = p1[kk + 1].groups if kk < 15 else pos[P].groups
        if args.fine == 1:
            em.op(f"s_memtime s[{68+2*kk}:{69+2*kk}]")
        emit_segment(em, p1[kk], nxt, args.PF, args.cap1, False, Q, args.qsep1)
    if args.fine == 1:
        em.op(f"s_memtime s[100:101]")
    if args.stamp:
        em.op("s_memtime s[52:53]")
        em.op("s_memrealtime s[60:61]")
    em.label("L_steady")
    em.xcost = args.xcost
    for s in range(P, LOOP0):
        if args.fine == 2:
            em.op(f"s_memtime s[{68+2*(s-P)}:{69+2*(s-P)}]")
        emit_segment(em, pos[s], pos[s + 1].groups, args.PF, 3 if pos[s].nh > 1 else args.cap, args.v1, Q, args.qsep, args.qmax0)
    assert not Q, len(Q)
    if args.fine == 2:
        em.op(f"s_memtime s[{68+2*(LOOP0-P)}:{69+2*(LOOP0-P)}]")
    if LOOP0 & 4:
        em.op(f"s_mov_b32 s{sMb}, s{sM0}")
        em.op(f"s_add_u32 s{sMa}, s{sM0}, 0x10000")
        em.op(f"v_swap_b32 v{vXr}, v{vXr2}")
    else:
        em.op(f"s_mov_b32 s{sMa}, s{sM0}")
        em.op(f"s_add_u32 s{sMb}, s{sM0}, 0x10000")
    em.op(f"s_mov_b32 s{sXo}, {(LOOP0+5)*1024}")
    em.op(f"s_mov_b32 s{sOo}, {(LOOP0-3)*1024}")
    em.op(f"s_mov_b32 s{sCnt}, 0")

    def seg(s):
        q = list(pos[s].Q)
        emit_segment(em, pos[s], pos[s + 1].groups, args.PF, args.cap, args.v1, q, args.qsep)
        assert not q

    def flip():
        em.op(f"v_swap_b32 v{vXr}, v{vXr2}")
        em.op(f"s_xor_b32 s{sMa}, s{sMa}, 0x10000")
        em.op(f"s_xor_b32 s{sMb}, s{sMb}, 0x10000")

    em.label("L_loop")
    if linear:
        for s in range(LOOP0, 31):
            em.loop_it = (s - LOOP0) // 4
            seg(s)
            if s % 4 == 3:
                flip()
    else:
        em.loop_it = 0
        lds_entry = list(em.lds)
        for s in range(LOOP0, LOOP0 + 3):
            seg(s)
        em.op(f"s_cmp_eq_u32 s{sCnt}, {(32-LOOP0)//4-1}")
        em.op("s_cbranch_scc1 L_tail")
        saved = (list(em.lds), list(em.vm))
        seg(LOOP0 + 3)
        flip()
        em.op(f"s_add_u32 s{sCnt}, s{sCnt}, 1")
        em.op("s_branch L_loop")
        assert [t[1] - 64 for t in em.lds] == [t[1] for t in lds_entry], (em.lds, lds_entry)
        em.label("L_tail")
        em.lds = [(t[0], t[1] + (28 - LOOP0) * 16) for t in saved[0]]
        em.vm = saved[1]
    em.loop_it = (31 - LOOP0) // 4
    if args.fine == 2:
        em.op(f"s_memtime s[{70+2*(LOOP0-P)}:{71+2*(LOOP0-P)}]")
    tail_segment(em, pos[31], args)
    em.op("s_nop 7")
    for f in epilogue_ops(31, args):
        if f.gapsep:
            em.op("s_nop 1")
        f.fn(em)
    if args.fine == 2:
        em.op(f"s_memtime s[{72+2*(LOOP0-P)}:{73+2*(LOOP0-P)}]")
    if args.extra:
        em.op(f"s_mov_b32 s{sCnt}, 0")
        em.label("L_extra")
        for kk in range(16):
            for t in range(3):
                for db in range(2):
                    a = E[t] + 4 * db
                    em.op(f"v_mfma_f32_16x16x32_bf16 {vr(a)}, {wreg(kk,t,db)}, {vr(XF[kk & 3])}, {vr(a)}")
        em.op(f"s_add_u32 s{sCnt}, s{sCnt}, 1")
        em.op(f"s_cmp_lt_u32 s{sCnt}, {args.extra}")
        em.op("s_cbranch_scc1 L_extra")
    if args.stamp:
        em.op("s_waitcnt vmcnt(0) lgkmcnt(0)")
        em.op("s_memtime s[54:55]")
        em.op("s_memrealtime s[62:63]")
        em.op("s_waitcnt lgkmcnt(0)")
    if args.stamp == 2:
        em.op("s_mov_b64 exec, 1")
        em.op("v_mov_b32 v0, 0")
        em.op("s_not_b32 s3, s56")
        em.op("v_mov_b32 v4, s3")
        em.op("global_atomic_umax v0, v4, s[46:47]")
        em.op("v_mov_b32 v5, s62")
        em.op("global_atomic_umax v0, v5, s[46:47] offset:4")
        em.op("v_mov_b32 v12, s56")
        em.op("global_atomic_umax v0, v12, s[46:47] offset:32")
        for i in range(3):
            em.op(f"s_sub_u32 s3, s{50+2*i}, s{48+2*i}")
            em.op(f"v_mov_b32 v{6+i}, s3")
            em.op(f"global_atomic_umax v0, v{6+i}, s[46:47] offset:{20+4*i}")
            em.op("s_lshr_b32 s3, s3, 4")
            em.op(f"v_mov_b32 v{9+i}, s3")
            em.op(f"global_atomic_add v0, v{9+i}, s[46:47] offset:{8+4*i}")
            em.op(f"s_sub_u32 s3, s{58+2*i}, s{56+2*i}")
            em.op(f"v_mov_b32 v{13+i}, s3")
            em.op(f"global_atomic_add v0, v{13+i}, s[46:47] offset:{36+4*i}")
    elif args.stamp:
        em.op("s_lshl_b32 s3, s2, 3")
        em.op(f"s_add_u32 s3, s3, s{sWave}")
        em.op("s_lshl_b32 s3, s3, 6")
        em.op("v_mov_b32 v0, s3")
        for i in range(16):
            em.op(f"v_mov_b32 v{4+i}, s{48+i}")
        for i in range(4):
            em.op(f"global_store_dwordx4 v0, v[{4+4*i}:{7+4*i}], s[46:47] offset:{16*i}")
        if args.fine:
            em.op("v_add_u32 v0, 0x100000, v0")
            em.op("v_lshlrev_b32 v0, 1, v0")
            for i in range(17):
                em.op(f"v_mov_b32 v{4+i}, s{68+2*i}")
            for i in range(5):
                em.op(f"global_store_dwordx4 v0, v[{4+4*i}:{7+4*i}], s[46:47] offset:{16*i}")
    em.label("L_end")
    em.op("s_endpgm")
    em.label("L_code_end")
    return em


def main():
    ap = argparse.ArgumentParser()
    ap.add_argument("-o", default="standalone__batchnorm__sampling.s")
    ap.add_argument("--PF", type=int, default=3)
    ap.add_argument("--pre", type=int, default=1)
    ap.add_argument("--a_w", type=int, default=24)
    ap.add_argument("--a_done", type=int, default=43)
    ap.add_argument("--a_ep", type=int, default=8)
    ap.add_argument("--a_sync", type=int, default=1)
    ap.add_argument("--cap", type=int, default=2)
    ap.add_argument("--cap1", type=int, default=3)
    ap.add_argument("--qsep1", type=int, default=3)
    ap.add_argument("--qsep", type=int, default=2)
    ap.add_argument("--qmax", type=int, default=4)
    ap.add_argument("--bnk", type=int, default=6)
    ap.add_argument("--sy", type=int, default=2)
    ap.add_argument("--sy0", type=int, default=10)
    ap.add_argument("--v1", type=int, default=1)
    ap.add_argument("--rot", type=int, default=1)
    ap.add_argument("--stmod", type=str, default="")
    ap.add_argument("--cpf", type=int, default=1)
    ap.add_argument("--cpf1", type=int, default=6)
    ap.add_argument("--cpf2", type=int, default=21)
    ap.add_argument("--hpp", type=int, default=1)
    ap.add_argument("--touch", type=int, default=0)
    ap.add_argument("--xlate", type=int, default=1)
    ap.add_argument("--extra", type=int, default=0)
    ap.add_argument("--bnlate", type=int, default=1)
    ap.add_argument("--bn0", type=int, default=3)
    ap.add_argument("--w0first", type=int, default=0)
    ap.add_argument("--xcost", type=int, default=8)
    ap.add_argument("--xcost1", type=int, default=0)
    ap.add_argument("--a_h", type=int, default=0)
    ap.add_argument("--qmax0", type=int, default=6)
    ap.add_argument("--stamp", type=int, default=0)
    ap.add_argument("--fine", type=int, default=0)
    ap.add_argument("--dbg", type=str, default="")
    args = ap.parse_args()
    tr = build(args, linear=True)
    em = build(args, vm_override=tr.vm_sites)
    print("sites", tr.vm_sites, file=sys.stderr)
    out = HEADER
    out += '.amdgcn_target "amdgcn-amd-amdhsa--gfx950"\n.text\n'
    out += f".globl {NAME}\n.p2align 8\n.type {NAME},@function\n{NAME}:\n"
    lines = em.lines
    if args.dbg:
        i0 = min(i for i, l in enumerate(lines) if "v_mfma" in l)
        i1 = max(i for i, l in enumerate(lines) if "v_mfma" in l)
        body = lines[i0:i1]

        def drop(pred):
            nonlocal body
            body = [l for l in body if not pred(l)]
        if "b" in args.dbg: drop(lambda l: "s_barrier" in l)
        if "d" in args.dbg: drop(lambda l: " lds" in l and "buffer_load" in l)
        if "s" in args.dbg: drop(lambda l: "buffer_store" in l)
        if "e" in args.dbg: drop(lambda l: l.strip().startswith(("v_fma", "v_exp", "v_rcp", "v_mul", "v_cvt", "v_perm", "v_lshl", "v_and", "v_add", "v_sqrt")))
        if "T" in args.dbg: drop(lambda l: "_tr_" in l)
        if "v" in args.dbg: drop(lambda l: "vmcnt" in l)
        lines = lines[:i0] + body + lines[i1:]
    out += "\n".join(lines) + "\n"
    out += f""".section .rodata,"a"
.p2align 6
.amdhsa_kernel {NAME}
  .amdhsa_next_free_vgpr 512
  .amdhsa_next_free_sgpr 102
  .amdhsa_accum_offset 256
  .amdhsa_group_segment_fixed_size 0
  .amdhsa_kernarg_size 72
  .amdhsa_user_sgpr_count 2
  .amdhsa_user_sgpr_kernarg_segment_ptr 1
  .amdhsa_system_sgpr_workgroup_id_x 1
.end_amdhsa_kernel
"""
    open(args.o, "w").write(out)
    print("lines", len(em.lines), "dumps", em.dumps, file=sys.stderr)


if __name__ == "__main__":
    main()
```

```python
import sys, argparse
from gen2 import HEADER, NAME, Em, Group, Segment, vr, wreg

P = 8
R = [8, 16, 24, 32]
E = [40, 48, 56, 64, 72, 80]
XF = [88, 92, 96, 100]
SC, SH = 104, 112
TMP = [120, 121, 122, 123, 124, 125, 126, 127]
vWg, vWr0, vWr1, vXp, vXq = 123, 124, 125, 126, 127
vWr0b, vWr1b = 121, 122
vXr, vXr2, vO = 1, 2, 3
vXd = [4, 5, 6, 7]
BNR = 208
BNT = 224

sX, sW, sO = 8, 12, 16
sWave, sM0, sTmp, sC, sTmp2, sTmp3, sM0q = 20, 21, 23, 28, 29, 22, 26
sWc = [24, 25, 30, 31]
sMa, sMb, sXo, sOo, sCnt = 36, 37, 38, 39, 40
LOOP0 = 20
sXc = [32, 33, 34, 35]
WS = 65536
WB = 24576
WT = 8192


class F:
    def __init__(self, fn, kind="o", at=0, gapsep=0, need_bar=0, isload=False):
        self.fn, self.kind, self.at, self.gapsep, self.need_bar, self.isload = fn, kind, at, gapsep, need_bar, isload


def accreg(o):
    return E[o] if o <= P - 3 else R[o & 3]


def issue_read(em, g):
    if g.s < P:
        a = ((g.kk >> 1) & 3) * 16384 + g.s * 2048 + (g.kk & 1) * 512
        em.ldsop(f"ds_read_b128 {vr(XF[g.idx & 3])}, v{vXp} offset:{a}", ("xf", g.idx))
    else:
        a = (g.s & 7) * 16384 + (g.kk >> 2) * 4096 + (g.kk & 3) * 256
        base = vXr2 if a >= 65536 else vXr
        if em.loop_it is not None:
            base = vXr if (g.s - LOOP0) // 4 == em.loop_it else vXr2
        em.ldsop(f"ds_read_b128 {vr(XF[g.idx & 3])}, v{base} offset:{a & 65535}", ("xf", g.idx))


def epilogue_ops(o, args, at=0, half=None):
    a = accreg(o)
    rs = range(8) if half is None else range(4 * half, 4 * half + 4)
    L = []
    for r in rs:
        L.append(F(lambda em, r=r: em.op(f"v_fma_f32 v{a+r}, v{a+r}, v{SC+r}, v{SH+r}"), "v"))
    for r in rs:
        L.append(F(lambda em, r=r: em.op(f"v_exp_f32 v{TMP[r]}, v{a+r}"), "t"))
    for r in rs:
        L.append(F(lambda em, r=r: em.op(f"v_fma_f32 v{TMP[r]}, v{TMP[r]}, s{sC}, s{sC}"), "v"))
    for r in rs:
        L.append(F(lambda em, r=r: em.op(f"v_rcp_f32 v{TMP[r]}, v{TMP[r]}"), "t"))
    for r in rs:
        L.append(F(lambda em, r=r: em.op(f"v_mul_f32 v{a+r}, v{a+r}, v{TMP[r]}"), "v"))
    for r in rs[::2]:
        L.append(F(lambda em, r=r: em.op(f"v_cvt_pk_bf16_f32 v{a+r//2}, v{a+r}, v{a+r+1}"), "v"))
    if half in (None, 1):
        L.append(F(lambda em: em.op(f"v_permlane16_swap_b32 v{a}, v{a+2}"), "v", gapsep=2))
        L.append(F(lambda em: em.op(f"v_permlane16_swap_b32 v{a+1}, v{a+3}"), "v", gapsep=1))
        if o + 2 >= LOOP0 and o < 30:
            L.append(F(lambda em: em.op(f"s_add_u32 s{sOo}, s{sOo}, 1024"), "o"))
            L.append(F(lambda em: em.vmop(f"buffer_store_dwordx4 {vr(a)}, v{vO}, s[{sO}:{sO+3}], s{sOo} offen{args.stmod}", ("st", o)), "x", gapsep=1))
        else:
            L.append(F(lambda em: em.op(f"s_mov_b32 s{sTmp3}, {o*1024}"), "o"))
            L.append(F(lambda em: em.vmop(f"buffer_store_dwordx4 {vr(a)}, v{vO}, s[{sO}:{sO+3}], s{sTmp3} offen{args.stmod}", ("st", o)), "x", gapsep=1))
    L[0].at = at
    return L


def barrier(em):
    em.op("s_barrier")
    em.nbar += 1


def emit_segment(em, seg, nxt, PF, cap, v1, Q=None, qsep=4, qmax=99):
    allg = seg.groups + nxt
    streams = [list(s) for s in seg.streams]
    lastgap = [-99] * len(streams)
    gap = 0
    ngaps = sum(len(g.mfmas) for g in seg.groups)
    qn = 0
    for i, g in enumerate(seg.groups):
        if i + PF < len(allg):
            issue_read(em, allg[i + PF])
        em.wait_lds(("xf", g.idx))
        nm = len(g.mfmas)
        for j, (acc, w, first) in enumerate(g.mfmas):
            c = "0" if first else vr(acc)
            em.op(f"v_mfma_f32_16x16x32_bf16 {vr(acc)}, {w}, {vr(XF[g.idx & 3])}, {c}")
            em.gapno += 1
            n_left = max(cap - 2, 0) if j == nm - 1 else cap
            v_left = 8
            final = gap == ngaps - 1
            if final:
                n_left = 10**6
                nd = sum(len(st) for st in streams)
                if nd:
                    em.dumps.append((g.s, g.kk, nd))
            progress = True
            while progress and n_left > 0:
                progress = False
                if Q and Q[0].isload and em.gapno != em.lastm0 and not final and qn < qmax and v_left >= em.xcost and em.qfirst:
                    f = Q.pop(0)
                    f.fn(em)
                    em.lastload = em.gapno
                    v_left -= em.xcost
                    qn += 1
                    n_left -= 1
                    progress = True
                    continue
                for si, st in enumerate(streams):
                    if not st or n_left <= 0:
                        continue
                    f = st[0]
                    if not final:
                        if f.at > gap or gap < lastgap[si] + f.gapsep:
                            continue
                        cost = {"v": 8 if v1 else 4, "t": 8, "o": 0, "x": em.xcost}[f.kind]
                        if cost > v_left:
                            continue
                        v_left -= cost
                    else:
                        if f.gapsep or f.kind == "v":
                            em.op("s_nop 1")
                    f.fn(em)
                    st.pop(0)
                    lastgap[si] = gap
                    n_left -= 1
                    progress = True
                if Q and n_left > 0 and not final and qn < qmax:
                    f = Q[0]
                    ok = em.nbar >= f.need_bar
                    if f.gapsep and em.gapno < em.lastload + qsep:
                        ok = False
                    if f.isload and em.gapno == em.lastm0:
                        ok = False
                    if f.isload and v_left < em.xcost:
                        ok = False
                    if ok:
                        f.fn(em)
                        Q.pop(0)
                        if f.isload:
                            em.lastload = em.gapno
                            v_left -= em.xcost
                            qn += 1
                        else:
                            em.lastm0 = em.gapno
                        n_left -= 1
                        progress = True
            gap += 1
    for st in streams:
        assert not st


def tail_segment(em, seg, args):
    g0 = seg.groups[0].idx
    regs = {}
    for kk in range(16):
        regs[kk] = XF[(g0 + kk) & 3] if kk < 4 else E[0] + 4 * (kk - 4)
    for kk in range(args.PF, 16):
        a = 3 * 16384 + (kk >> 2) * 4096 + (kk & 3) * 256
        em.ldsop(f"ds_read_b128 {vr(regs[kk])}, v{vXr} offset:{a}", ("xf", g0 + kk))
    st = list(seg.streams[1])
    last = -99
    gap = 0
    for i, g in enumerate(seg.groups):
        if i < 16:
            em.wait_lds(("xf", g0 + i))
        for (acc, w, first) in g.mfmas:
            em.op(f"v_mfma_f32_16x16x32_bf16 {vr(acc)}, {w}, {vr(regs[g.kk])}, {vr(acc)}")
            v_left = 8
            while st and st[0].at <= gap and gap >= last + st[0].gapsep:
                cost = {"v": 4, "t": 8, "o": 0, "x": 8}[st[0].kind]
                if cost > v_left:
                    break
                v_left -= cost
                st.pop(0).fn(em)
                last = gap
            gap += 1
    if st:
        em.dumps.append(("tail", len(st)))
    for f in st:
        if f.gapsep:
            em.op("s_nop 1")
        f.fn(em)


def dma(srd, voff, m0expr, soffexpr, tag, need_bar):
    def pre(em):
        em.op(f"s_add_u32 m0, {m0expr}")
        if soffexpr:
            em.op(soffexpr)
    return [F(pre, "o", gapsep=1, need_bar=need_bar),
            F(lambda em: em.vmop(f"buffer_load_dwordx4 v{voff}, s[{srd}:{srd+3}], s{sTmp2} offen lds", tag), "o", isload=True)]


def xchunk(c, ii, need_bar=0):
    L = []
    for i in ii:
        L += dma(sX, vXq, f"s{sM0q}, {(c & 3)*16384 + i*2048}",
                 f"s_add_u32 s{sTmp2}, s{sXc[c>>1]}, {i*1024 + (c&1)*128}", ("xc", c), need_bar)
    return L


def xstage(st, need_bar=0):
    L = []
    for c4 in range(4):
        L += dma(sX, vXd[c4], f"s{sM0}, {(st & 7)*16384 + c4*4096}",
                 f"s_mov_b32 s{sTmp2}, {st*1024}" if c4 == 0 else None, ("x", st), need_bar)
    return L


def xstage_loop(s, st, need_bar=0):
    same = (st - LOOP0) // 4 % 2 == (s - LOOP0) // 4 % 2
    sm = sMa if same else sMb
    L = []

    def adv(em):
        em.op(f"s_add_u32 s{sXo}, s{sXo}, 1024")
        em.op(f"s_cmp_lt_u32 s{sXo}, 32768")
        em.op(f"s_cselect_b32 s{sTmp2}, s{sXo}, 0x100000")
    L.append(F(adv, "o", need_bar=need_bar))
    for c4 in range(4):
        L += dma(sX, vXd[c4], f"s{sm}, {(st & 3)*16384 + c4*4096}", None, ("x", st), need_bar)
    return L


def code_prefetch(label, lds):
    if lds:
        def pre(em):
            em.op(f"s_add_u32 m0, s{sM0}, 131072")
            em.op(f"s_mov_b32 s{sTmp2}, {label}-L_pc")
        return [F(pre, "o", gapsep=1),
                F(lambda em: em.vmop(f"buffer_load_dword v0, s[64:67], s{sTmp2} offen lds", "cpf"), "o", isload=True)]
    return [F(lambda em: em.op(f"s_mov_b32 s{sTmp2}, {label}-L_pc"), "o", gapsep=1),
            F(lambda em: em.vmop(f"buffer_load_dword v120, v0, s[64:67], s{sTmp2} offen", "cpf"), "o", isload=True)]


def wload(kk, need_bar=0):
    L = []
    for t in range(3):
        for h in range(2):
            L += dma(sW, vWg, f"s{sM0}, {WS + (kk & 3)*WB + t*WT + h*4096}",
                     f"s_add_u32 s{sTmp2}, s{sWc[kk>>2]}, {t*524288 + (kk&3)*32768 + h*16384}", ("w", kk), need_bar)
    return L


def bn_loads(em):
    for k, sp in enumerate((36, 38, 40, 42)):
        em.vmop(f"global_load_dwordx2 v[{BNR+4*k}:{BNR+4*k+1}], v{BNT}, s[{sp}:{sp+1}]", "bn")
        em.vmop(f"global_load_dwordx2 v[{BNR+4*k+2}:{BNR+4*k+3}], v{BNT}, s[{sp}:{sp+1}] offset:32", "bn")


def bn_compute_items():
    L = [F(lambda em: em.wait_vm("bn"), "o")]
    v = lambda s: L.append(F(lambda em: em.op(s), "v"))
    t = lambda s: L.append(F(lambda em: em.op(s), "t"))
    M, G, PK = BNT, BNT + 8, BNT + 16
    raw = lambda k, i: BNR + 4 * k + i
    for i in range(4):
        v(f"v_lshlrev_b32 v{SC+2*i}, 16, v{raw(1,i)}")
        v(f"v_and_b32 v{SC+2*i+1}, 0xffff0000, v{raw(1,i)}")

    def rnd():
        for i in range(4):
            v(f"v_cvt_pk_bf16_f32 v{PK+i}, v{SC+2*i}, v{SC+2*i+1}")
        for i in range(4):
            v(f"v_lshlrev_b32 v{SC+2*i}, 16, v{PK+i}")
            v(f"v_and_b32 v{SC+2*i+1}, 0xffff0000, v{PK+i}")
    for r in range(8):
        v(f"v_add_f32 v{SC+r}, 0x3727c5ac, v{SC+r}")
    rnd()
    for r in range(8):
        t(f"v_sqrt_f32 v{SC+r}, v{SC+r}")
    for i in range(4):
        v(f"v_lshlrev_b32 v{G+2*i}, 16, v{raw(2,i)}")
        v(f"v_and_b32 v{G+2*i+1}, 0xffff0000, v{raw(2,i)}")
    rnd()
    for r in range(8):
        t(f"v_rcp_f32 v{SC+r}, v{SC+r}")
    for i in range(4):
        v(f"v_lshlrev_b32 v{M+2*i}, 16, v{raw(0,i)}")
        v(f"v_and_b32 v{M+2*i+1}, 0xffff0000, v{raw(0,i)}")
    rnd()
    for r in range(8):
        v(f"v_mul_f32 v{SC+r}, v{SC+r}, v{G+r}")
    for i in range(4):
        v(f"v_lshlrev_b32 v{SH+2*i}, 16, v{raw(3,i)}")
        v(f"v_and_b32 v{SH+2*i+1}, 0xffff0000, v{raw(3,i)}")
    rnd()
    for r in range(8):
        v(f"v_fma_f32 v{SH+r}, -v{M+r}, v{SC+r}, v{SH+r}")
    for r in range(8):
        v(f"v_mul_f32 v{SC+r}, s{sC}, v{SC+r}")
    for r in range(8):
        v(f"v_mul_f32 v{SH+r}, s{sC}, v{SH+r}")
    return L


def wstage_items(kk, a_w, a_done):
    b = (kk & 1) * WB
    rd = (vWr0b, vWr1b) if kk & 2 else (vWr0, vWr1)
    L = [F(lambda em: em.wait_vm(("w", kk)), "o", at=a_w),
         F(barrier, "o")]
    for t in range(3):
        for db in range(2):
            for h in range(2):
                off = b + t * WT + h * 1024
                L.append(F(lambda em, t=t, db=db, h=h, off=off: em.ldsop(
                    f"ds_read_b64_tr_b16 {wreg(kk,t,db,2*h,2)}, v{rd[db]} offset:{off}", ("wr", kk)), "o", gapsep=1))
    L.append(F(lambda em: em.wait_lds(("wr", kk)), "o", at=a_done))
    return L


def emit_now(em, items):
    for f in items:
        if f.isload:
            em.op("s_nop 0")
        f.fn(em)


def prologue(em, args):
    em.op("s_cmp_ge_u32 s2, 256")
    em.op("s_cbranch_scc1 L_end")
    em.op("s_load_dwordx8 s[32:39], s[0:1], 0")
    em.op("s_load_dwordx4 s[40:43], s[0:1], 32")
    em.op("s_load_dwordx2 s[44:45], s[0:1], 48")
    if args.stamp:
        em.op(f"s_load_dwordx2 s[46:47], s[0:1], {56 if args.stamp == 2 else 64}")
        em.op("s_memtime s[48:49]")
        em.op("s_memrealtime s[56:57]")
    if args.cpf:
        em.op("s_getpc_b64 s[64:65]")
        em.label("L_pc")
        em.op("s_and_b32 s65, s65, 0xffff")
        em.op("s_mov_b32 s66, L_code_end-L_pc")
        em.op("s_mov_b32 s67, 0x00020000")
    em.op("v_lshrrev_b32 v12, 6, v0")
    em.op("v_and_b32 v11, 63, v0")
    em.op("v_lshlrev_b32 v0, 6, v0")
    if args.cpf:
        em.vmop("buffer_load_dword v255, v0, s[64:67], 0 offen", "cpf")
    em.op(f"v_readfirstlane_b32 s{sWave}, v12")
    if args.map == 0:
        em.op("s_and_b32 s3, s2, 7")
        em.op("s_lshr_b32 s4, s2, 3")
        em.op("s_and_b32 s5, s4, 3")
        em.op("s_lshr_b32 s4, s4, 2")
    else:
        em.op("s_lshr_b32 s3, s2, 5")
        em.op("s_and_b32 s5, s2, 3")
        em.op("s_bfe_u32 s4, s2, 0x30002")
    if args.rot == 1:
        em.op("s_add_u32 s6, s4, s3")
        em.op("s_and_b32 s6, s6, 3")
    elif args.rot == 2:
        em.op("s_and_b32 s6, s3, 3")
    elif args.rot == 3:
        em.op("s_lshl_b32 s6, s4, 1")
        em.op("s_add_u32 s6, s6, s3")
        em.op("s_and_b32 s6, s6, 3")
    elif args.rot == 4:
        em.op("s_lshr_b32 s6, s3, 1")
    else:
        em.op("s_mov_b32 s6, 0")
    em.op("s_lshl_b32 s3, s3, 3")
    em.op("s_add_u32 s3, s3, s4")
    em.op("s_lshl_b32 s3, s3, 19")
    em.op("s_lshl_b32 s5, s5, 8")
    for c4 in range(4):
        em.op(f"s_add_u32 s7, s6, {c4}")
        em.op("s_and_b32 s7, s7, 3")
        em.op(f"s_lshl_b32 s{sWc[c4]}, s7, 17")
    em.op("v_and_b32 v13, 15, v11")
    em.op("v_lshrrev_b32 v14, 4, v11")
    em.op(f"s_and_b32 s7, s{sWave}, 1")
    em.op("s_mul_i32 s4, s7, 3")
    em.op("v_and_b32 v17, 3, v11")
    em.op("v_xor_b32 v16, s4, v17")
    em.op("v_lshlrev_b32 v16, 4, v16")
    em.op("v_lshrrev_b32 v15, 5, v11")
    em.op("v_lshl_add_u32 v16, v15, 6, v16")
    em.op("v_bfe_u32 v15, v11, 2, 3")
    em.op("v_lshl_add_u32 v16, v15, 15, v16")
    em.op("s_lshl_b32 s4, s7, 18")
    em.op(f"v_add_u32 v{vXq}, s4, v16")
    em.op(f"s_lshr_b32 s4, s{sWave}, 1")
    em.op(f"s_lshl_b32 s{sM0q}, s4, 13")
    em.op("s_lshl_b32 s7, s7, 10")
    em.op(f"s_add_u32 s{sM0q}, s{sM0q}, s7")
    em.op("s_lshl_b32 s27, s4, 12")
    em.op("s_lshl_b32 s4, s4, 2")
    em.op("v_add_u32 v16, s4, v14")
    em.op("v_lshrrev_b32 v15, 1, v13")
    em.op("v_xor_b32 v16, v16, v15")
    em.op("v_lshlrev_b32 v16, 5, v16")
    em.op("v_and_b32 v15, 1, v13")
    em.op("v_lshl_add_u32 v16, v15, 4, v16")
    em.op("v_lshl_add_u32 v16, v14, 10, v16")
    em.op(f"s_lshl_b32 s7, s{sWave}, 12")
    em.op(f"v_add_u32 v{vWg}, s7, v16")
    em.op(f"s_lshl_b32 s{sM0}, s{sWave}, 10")
    em.op(f"s_mov_b32 s{sC}, 0xbfb8aa3b")
    em.op("s_waitcnt lgkmcnt(0)")
    em.op(f"s_add_u32 s{sX}, s32, s3")
    em.op(f"s_addc_u32 s{sX+1}, s33, 0")
    em.op(f"s_mov_b32 s{sX+2}, 524288")
    em.op(f"s_mov_b32 s{sX+3}, 0x00020000")
    em.op(f"s_add_u32 s{sW}, s34, s5")
    em.op(f"s_addc_u32 s{sW+1}, s35, 0")
    em.op(f"s_sub_u32 s{sW+2}, 1572864, s5")
    em.op(f"s_mov_b32 s{sW+3}, 0x00020000")
    for c4 in range(4):
        em.op(f"s_lshr_b32 s4, s{sWc[c4]}, 9")
        em.op(f"s_add_u32 s{sXc[c4]}, s4, s27")


def prologue2(em):
    em.op("s_add_u32 s3, s3, s5")
    em.op(f"s_add_u32 s{sO}, s44, s3")
    em.op(f"s_addc_u32 s{sO+1}, s45, 0")
    em.op(f"s_sub_u32 s{sO+2}, 524288, s5")
    em.op(f"s_mov_b32 s{sO+3}, 0x00020000")
    em.op(f"s_lshr_b32 s7, s{sWave}, 1")
    em.op("s_mul_i32 s7, s7, 3")
    em.op("v_xor_b32 v17, s7, v17")
    em.op("v_lshlrev_b32 v17, 4, v17")
    em.op("v_lshl_add_u32 v17, v14, 6, v17")
    em.op("v_bfe_u32 v16, v11, 2, 2")
    em.op("v_lshl_add_u32 v17, v16, 15, v17")
    em.op(f"s_lshl_b32 s7, s{sWave}, 17")
    em.op("v_add_u32 v17, s7, v17")
    for c4 in range(4):
        em.op(f"s_lshr_b32 s7, s{sWc[c4]}, 9")
        em.op(f"v_add_u32 v{vXd[c4]}, s7, v17")
    em.op(f"s_lshl_b32 s7, s{sWave}, 6")
    em.op("s_add_u32 s4, s7, s5")
    em.op("v_lshlrev_b32 v16, 3, v14")
    em.op(f"v_add_u32 v{BNT}, s4, v16")
    em.op("v_lshrrev_b32 v15, 3, v13")
    em.op("v_mul_u32_u24 v17, 3, v15")
    em.op("v_xor_b32 v17, v14, v17")
    em.op("v_lshlrev_b32 v17, 4, v17")
    em.op("v_lshl_add_u32 v18, v15, 10, v17")
    em.op("v_and_b32 v16, 7, v13")
    em.op(f"v_lshl_add_u32 v{vXp}, v16, 6, v18")
    em.op("v_lshrrev_b32 v16, 2, v13")
    em.op("v_lshl_add_u32 v17, v16, 10, v17")
    em.op("v_and_b32 v16, 3, v13")
    em.op(f"v_lshl_add_u32 v{vXr}, v16, 6, v17")
    em.op(f"v_add_u32 v{vXr2}, 0x10000, v{vXr}")
    em.op("v_lshrrev_b32 v16, 2, v13")
    em.op("v_and_b32 v17, 1, v14")
    em.op("v_lshl_add_u32 v17, v17, 2, v16")
    em.op(f"s_lshl_b32 s3, s{sWave}, 1")
    em.op("v_xor_b32 v17, s3, v17")
    em.op("v_lshlrev_b32 v17, 5, v17")
    em.op("v_lshl_add_u32 v16, v14, 3, v16")
    em.op("v_lshl_add_u32 v17, v16, 8, v17")
    em.op("v_and_b32 v16, 3, v11")
    em.op("v_lshl_add_u32 v17, v16, 3, v17")
    em.op(f"v_add_u32 v{vWr0}, {WS}, v17")
    em.op(f"v_xor_b32 v{vWr1}, 32, v{vWr0}")
    em.op(f"v_add_u32 v{vWr0b}, {2*WB}, v{vWr0}")
    em.op(f"v_add_u32 v{vWr1b}, {2*WB}, v{vWr1}")
    em.op("v_and_b32 v16, 1, v14")
    em.op("v_lshlrev_b32 v16, 5, v16")
    em.op("v_lshrrev_b32 v17, 1, v14")
    em.op("v_lshl_add_u32 v16, v17, 4, v16")
    em.op("v_lshl_add_u32 v16, v13, 15, v16")
    em.op(f"v_add_u32 v{vO}, s7, v16")


def build(args, vm_override=None, linear=False):
    em = Em()
    em.vm_override = vm_override
    em.loop_it = None
    em.xcost = args.xcost1
    em.qfirst = True
    em.nbar = 0
    em.gapno = 0
    em.lastload = -99
    em.lastm0 = -99
    prologue(em, args)
    emit_now(em, (wload(0) + xchunk(0, range(4)) + [F(lambda em: em.vm.append(("w", 0)) if False else None)]) if args.w0first else (xchunk(0, range(4)) + wload(0)))
    def touch_x(em):
        em.op("v_lshlrev_b32 v18, 7, v11")
        em.op(f"s_lshr_b32 s4, s5, 6")
        em.op(f"s_add_u32 s4, s4, s{sWave}")
        em.op("s_lshl_b32 s4, s4, 15")
        em.vmop(f"buffer_load_dword v254, v18, s[{sX}:{sX+3}], s4 offen", "touch")

    def touch_w(em):
        em.op("v_lshlrev_b32 v18, 7, v11")
        em.op("s_lshr_b32 s4, s2, 3")
        em.op("s_lshl_b32 s4, s4, 2")
        em.op(f"s_add_u32 s4, s4, s{sWave}")
        em.op("s_lshl_b32 s4, s4, 13")
        em.op("s_sub_u32 s4, s4, s5")
        em.vmop(f"buffer_load_dword v253, v18, s[{sW}:{sW+3}], s4 offen", "touch")
        em.op("s_add_u32 s4, s4, 0x100000")
        em.vmop(f"buffer_load_dword v252, v18, s[{sW}:{sW+3}], s4 offen", "touch")
    if args.touch & 1:
        touch_x(em)
    if args.touch & 2:
        touch_w(em)
    prologue2(em)
    emit_now(em, wload(1))
    if not args.bnlate:
        bn_loads(em)
    emit_now(em, xchunk(1, range(4)))
    B = lambda k: k + 2
    Q = []
    if args.xlate:
        pre = [wload(2), wload(3)]
        for it in pre[:args.pre]:
            emit_now(em, it)
        for it in pre[args.pre:]:
            Q += it
        if args.bnlate:
            Q.append(F(bn_loads, "o", isload=True))
        for kk in range(12):
            u = kk + 4
            if u % 2 == 0:
                c = u // 2
                Q += xchunk(c, range(4), B(2 * c - 6) if c >= 4 else 0)
            if u == 15:
                Q += xstage(8, B(10))
            Q += wload(u, B(kk))
            if args.cpf and kk == args.cpf1:
                Q += code_prefetch("L_steady", False)
    else:
        pre = [wload(2), xchunk(2, range(4)), wload(3)]
        for it in pre[:args.pre]:
            emit_now(em, it)
        for it in pre[args.pre:]:
            Q += it
        for kk in range(12):
            c = (kk + 6) // 2
            if c <= 7:
                Q += xchunk(c, (0, 1) if kk % 2 == 0 else (2, 3), B(2 * c - 6) if c >= 4 else 0)
            if kk + 4 == 15:
                Q += xstage(8, B(10))
            Q += wload(kk + 4, B(kk))
            if args.cpf and kk == args.cpf1:
                Q += code_prefetch("L_steady", False)
    Q += xstage(9, B(12)) + xstage(10, B(14))

    groups = []
    started = set()

    def mk(s, kk, taps=(0, 1, 2)):
        m = []
        for t in taps:
            o = s + 1 - t
            if o < 0 or o > 31:
                continue
            first = o not in started
            started.add(o)
            for db in range(2):
                m.append((accreg(o) + 4 * db, wreg(kk, t, db), first))
        g = Group(s, kk, m)
        g.idx = len(groups)
        groups.append(g)
        return g

    p1 = [Segment([mk(p, kk) for p in range(P)]) for kk in range(16)]
    pos = {s: Segment([mk(s, kk) for kk in range(16)]) for s in range(P, 31)}
    pos[31] = Segment([mk(31, kk, (2,)) for kk in range(16)] + [mk(31, kk, (1,)) for kk in range(16)])

    bn = bn_compute_items()
    nb = (len(bn) + args.bnk - 1) // args.bnk
    for kk in range(16):
        sg = p1[kk]
        if kk < 15:
            sg.streams.append(wstage_items(kk + 1, args.a_w, args.a_done))
        if args.bn0 <= kk < args.bnk + args.bn0:
            it, bn = bn[:nb], bn[nb:]
            sg.streams.append(it)
    assert not bn and args.bnk + args.bn0 <= 12

    it = wstage_items(0, 0, 0)
    if args.w0first:
        em.wait_vm(("xc", 0))
    emit_now(em, it[:-1])
    for g in groups[:args.PF]:
        issue_read(em, g)
    emit_now(em, it[-1:])
    if args.stamp:
        em.op("s_memtime s[50:51]")
        em.op("s_memrealtime s[58:59]")

    syncs = [s for s in range(P, 31) if s < args.sy0 or s % 2 == 0]
    nb0 = 16
    for st in range(11, LOOP0 + 6):
        first_ok = min(s for s in syncs if s >= max(st - 7, P))
        Q += xstage(st, nb0 + syncs.index(first_ok) + 1)
        if args.cpf and st == args.cpf2:
            Q += code_prefetch("L_loop", True)
        if args.cpf and st == 13:
            Q += code_prefetch("L_steady+16384", True)
    halves = [(o, h) for o in range(P - 2) for h in range(2)]
    for s in range(P, 32):
        ep = []
        pos[s].nh = 0
        for _ in range(args.hpp):
            if halves:
                o, h = halves.pop(0)
                ep += epilogue_ops(o, args, half=h, at=(args.a_ep if s == P else args.a_h))
                pos[s].nh += 1
        ep += epilogue_ops(s - 2, args, at=args.a_ep)
        sy = []
        if s in syncs:
            later = [x for x in syncs if x > s]
            need = later[0] if later else 31
            site = (s & 3) if s >= LOOP0 else None
            sy.append(F(lambda em, need=need, site=site: em.wait_vm(("x", need), site=site), "o", at=args.a_sync))
            sy.append(F(barrier, "x"))
        if s == 31:
            ep[0].at = 0
            ep += epilogue_ops(30, args, at=39)
        pos[s].streams = [sy, ep]
        if LOOP0 <= s < 31:
            nbar = nb0 + len([x for x in syncs if x <= s])
            pos[s].Q = xstage_loop(s, s + 6, nbar)
    assert not halves

    for kk in range(16):
        nxt = p1[kk + 1].groups if kk < 15 else pos[P].groups
        if args.fine == 1:
            em.op(f"s_memtime s[{68+2*kk}:{69+2*kk}]")
        emit_segment(em, p1[kk], nxt, args.PF, args.cap1, False, Q, args.qsep1)
    if args.fine == 1:
        em.op(f"s_memtime s[100:101]")
    if args.stamp:
        em.op("s_memtime s[52:53]")
        em.op("s_memrealtime s[60:61]")
    em.label("L_steady")
    em.xcost = args.xcost
    for s in range(P, LOOP0):
        if args.fine == 2:
            em.op(f"s_memtime s[{68+2*(s-P)}:{69+2*(s-P)}]")
        emit_segment(em, pos[s], pos[s + 1].groups, args.PF, 3 if pos[s].nh > 1 else args.cap, args.v1, Q, args.qsep, args.qmax0)
    assert not Q, len(Q)
    if args.fine == 2:
        em.op(f"s_memtime s[{68+2*(LOOP0-P)}:{69+2*(LOOP0-P)}]")
    if LOOP0 & 4:
        em.op(f"s_mov_b32 s{sMb}, s{sM0}")
        em.op(f"s_add_u32 s{sMa}, s{sM0}, 0x10000")
        em.op(f"v_swap_b32 v{vXr}, v{vXr2}")
    else:
        em.op(f"s_mov_b32 s{sMa}, s{sM0}")
        em.op(f"s_add_u32 s{sMb}, s{sM0}, 0x10000")
    em.op(f"s_mov_b32 s{sXo}, {(LOOP0+5)*1024}")
    em.op(f"s_mov_b32 s{sOo}, {(LOOP0-3)*1024}")
    em.op(f"s_mov_b32 s{sCnt}, 0")

    def seg(s):
        q = list(pos[s].Q)
        emit_segment(em, pos[s], pos[s + 1].groups, args.PF, args.cap, args.v1, q, args.qsep)
        assert not q

    def flip():
        em.op(f"v_swap_b32 v{vXr}, v{vXr2}")
        em.op(f"s_xor_b32 s{sMa}, s{sMa}, 0x10000")
        em.op(f"s_xor_b32 s{sMb}, s{sMb}, 0x10000")

    em.label("L_loop")
    if linear:
        for s in range(LOOP0, 31):
            em.loop_it = (s - LOOP0) // 4
            seg(s)
            if s % 4 == 3:
                flip()
    else:
        em.loop_it = 0
        lds_entry = list(em.lds)
        for s in range(LOOP0, LOOP0 + 3):
            seg(s)
        em.op(f"s_cmp_eq_u32 s{sCnt}, {(32-LOOP0)//4-1}")
        em.op("s_cbranch_scc1 L_tail")
        saved = (list(em.lds), list(em.vm))
        seg(LOOP0 + 3)
        flip()
        em.op(f"s_add_u32 s{sCnt}, s{sCnt}, 1")
        em.op("s_branch L_loop")
        assert [t[1] - 64 for t in em.lds] == [t[1] for t in lds_entry], (em.lds, lds_entry)
        em.label("L_tail")
        em.lds = [(t[0], t[1] + (28 - LOOP0) * 16) for t in saved[0]]
        em.vm = saved[1]
    em.loop_it = (31 - LOOP0) // 4
    if args.fine == 2:
        em.op(f"s_memtime s[{70+2*(LOOP0-P)}:{71+2*(LOOP0-P)}]")
    tail_segment(em, pos[31], args)
    em.op("s_nop 7")
    for f in epilogue_ops(31, args):
        if f.gapsep:
            em.op("s_nop 1")
        f.fn(em)
    if args.fine == 2:
        em.op(f"s_memtime s[{72+2*(LOOP0-P)}:{73+2*(LOOP0-P)}]")
    if args.extra:
        em.op(f"s_mov_b32 s{sCnt}, 0")
        em.label("L_extra")
        for kk in range(16):
            for t in range(3):
                for db in range(2):
                    a = E[t] + 4 * db
                    em.op(f"v_mfma_f32_16x16x32_bf16 {vr(a)}, {wreg(kk,t,db)}, {vr(XF[kk & 3])}, {vr(a)}")
        em.op(f"s_add_u32 s{sCnt}, s{sCnt}, 1")
        em.op(f"s_cmp_lt_u32 s{sCnt}, {args.extra}")
        em.op("s_cbranch_scc1 L_extra")
    if args.stamp:
        em.op("s_waitcnt vmcnt(0) lgkmcnt(0)")
        em.op("s_memtime s[54:55]")
        em.op("s_memrealtime s[62:63]")
        em.op("s_waitcnt lgkmcnt(0)")
    if args.stamp == 2:
        em.op("s_mov_b64 exec, 1")
        em.op("v_mov_b32 v0, 0")
        em.op("s_not_b32 s3, s56")
        em.op("v_mov_b32 v4, s3")
        em.op("global_atomic_umax v0, v4, s[46:47]")
        em.op("v_mov_b32 v5, s62")
        em.op("global_atomic_umax v0, v5, s[46:47] offset:4")
        em.op("v_mov_b32 v12, s56")
        em.op("global_atomic_umax v0, v12, s[46:47] offset:32")
        for i in range(3):
            em.op(f"s_sub_u32 s3, s{50+2*i}, s{48+2*i}")
            em.op(f"v_mov_b32 v{6+i}, s3")
            em.op(f"global_atomic_umax v0, v{6+i}, s[46:47] offset:{20+4*i}")
            em.op("s_lshr_b32 s3, s3, 4")
            em.op(f"v_mov_b32 v{9+i}, s3")
            em.op(f"global_atomic_add v0, v{9+i}, s[46:47] offset:{8+4*i}")
            em.op(f"s_sub_u32 s3, s{58+2*i}, s{56+2*i}")
            em.op(f"v_mov_b32 v{13+i}, s3")
            em.op(f"global_atomic_add v0, v{13+i}, s[46:47] offset:{36+4*i}")
    elif args.stamp:
        em.op("s_lshl_b32 s3, s2, 3")
        em.op(f"s_add_u32 s3, s3, s{sWave}")
        em.op("s_lshl_b32 s3, s3, 6")
        em.op("v_mov_b32 v0, s3")
        for i in range(16):
            em.op(f"v_mov_b32 v{4+i}, s{48+i}")
        for i in range(4):
            em.op(f"global_store_dwordx4 v0, v[{4+4*i}:{7+4*i}], s[46:47] offset:{16*i}")
        if args.fine:
            em.op("v_add_u32 v0, 0x100000, v0")
            em.op("v_lshlrev_b32 v0, 1, v0")
            for i in range(17):
                em.op(f"v_mov_b32 v{4+i}, s{68+2*i}")
            for i in range(5):
                em.op(f"global_store_dwordx4 v0, v[{4+4*i}:{7+4*i}], s[46:47] offset:{16*i}")
    em.label("L_end")
    em.op("s_endpgm")
    em.label("L_code_end")
    return em


def main():
    ap = argparse.ArgumentParser()
    ap.add_argument("-o", default="standalone__batchnorm__sampling.s")
    ap.add_argument("--PF", type=int, default=3)
    ap.add_argument("--pre", type=int, default=1)
    ap.add_argument("--a_w", type=int, default=24)
    ap.add_argument("--a_done", type=int, default=43)
    ap.add_argument("--a_ep", type=int, default=8)
    ap.add_argument("--a_sync", type=int, default=1)
    ap.add_argument("--cap", type=int, default=2)
    ap.add_argument("--cap1", type=int, default=2)
    ap.add_argument("--qsep1", type=int, default=3)
    ap.add_argument("--qsep", type=int, default=2)
    ap.add_argument("--qmax", type=int, default=4)
    ap.add_argument("--bnk", type=int, default=6)
    ap.add_argument("--sy", type=int, default=2)
    ap.add_argument("--sy0", type=int, default=10)
    ap.add_argument("--v1", type=int, default=1)
    ap.add_argument("--rot", type=int, default=1)
    ap.add_argument("--stmod", type=str, default=" nt")
    ap.add_argument("--cpf", type=int, default=1)
    ap.add_argument("--cpf1", type=int, default=6)
    ap.add_argument("--cpf2", type=int, default=21)
    ap.add_argument("--hpp", type=int, default=1)
    ap.add_argument("--touch", type=int, default=0)
    ap.add_argument("--xlate", type=int, default=1)
    ap.add_argument("--map", type=int, default=0)
    ap.add_argument("--extra", type=int, default=0)
    ap.add_argument("--bnlate", type=int, default=0)
    ap.add_argument("--bn0", type=int, default=1)
    ap.add_argument("--w0first", type=int, default=0)
    ap.add_argument("--xcost", type=int, default=8)
    ap.add_argument("--xcost1", type=int, default=0)
    ap.add_argument("--a_h", type=int, default=0)
    ap.add_argument("--qmax0", type=int, default=6)
    ap.add_argument("--stamp", type=int, default=0)
    ap.add_argument("--fine", type=int, default=0)
    ap.add_argument("--dbg", type=str, default="")
    args = ap.parse_args()
    tr = build(args, linear=True)
    em = build(args, vm_override=tr.vm_sites)
    print("sites", tr.vm_sites, file=sys.stderr)
    out = HEADER
    out += '.amdgcn_target "amdgcn-amd-amdhsa--gfx950"\n.text\n'
    out += f".globl {NAME}\n.p2align 8\n.type {NAME},@function\n{NAME}:\n"
    lines = em.lines
    if args.dbg:
        i0 = min(i for i, l in enumerate(lines) if "v_mfma" in l)
        i1 = max(i for i, l in enumerate(lines) if "v_mfma" in l)
        body = lines[i0:i1]

        def drop(pred):
            nonlocal body
            body = [l for l in body if not pred(l)]
        if "b" in args.dbg: drop(lambda l: "s_barrier" in l)
        if "d" in args.dbg: drop(lambda l: " lds" in l and "buffer_load" in l)
        if "s" in args.dbg: drop(lambda l: "buffer_store" in l)
        if "e" in args.dbg: drop(lambda l: l.strip().startswith(("v_fma", "v_exp", "v_rcp", "v_mul", "v_cvt", "v_perm", "v_lshl", "v_and", "v_add", "v_sqrt")))
        if "T" in args.dbg: drop(lambda l: "_tr_" in l)
        if "v" in args.dbg: drop(lambda l: "vmcnt" in l)
        lines = lines[:i0] + body + lines[i1:]
    out += "\n".join(lines) + "\n"
    out += f""".section .rodata,"a"
.p2align 6
.amdhsa_kernel {NAME}
  .amdhsa_next_free_vgpr 512
  .amdhsa_next_free_sgpr 102
  .amdhsa_accum_offset 256
  .amdhsa_group_segment_fixed_size 0
  .amdhsa_kernarg_size 72
  .amdhsa_user_sgpr_count 2
  .amdhsa_user_sgpr_kernarg_segment_ptr 1
  .amdhsa_system_sgpr_workgroup_id_x 1
.end_amdhsa_kernel
"""
    open(args.o, "w").write(out)
    print("lines", len(em.lines), "dumps", em.dumps, file=sys.stderr)


if __name__ == "__main__":
    main()
```

```python
import sys, argparse
import gen5
from gen5 import *

B6 = XF + [R[1], R[1] + 4]


class Frag:
    def __init__(self, s, kk, buf, need_bar):
        self.s, self.kk, self.buf, self.need_bar = s, kk, buf, need_bar
        self.first = self.last = None
        self.prev = None


class Seg:
    def __init__(self):
        self.m = []
        self.streams = []
        self.Q = None


def frag_read(em, f):
    if f.s < P:
        a = ((f.kk >> 1) & 3) * 16384 + f.s * 2048 + (f.kk & 1) * 512
        base = vXp
    else:
        a = (f.s & 7) * 16384 + (f.kk >> 2) * 4096 + (f.kk & 3) * 256
        base = vXr2 if a >= 65536 else vXr
        if em.loop_it is not None:
            base = vXr if (f.s - LOOP0) // 4 == em.loop_it else vXr2
    em.ldsop(f"ds_read_b128 {vr(f.buf)}, v{base} offset:{a & 65535}", ("xf", f.id))
    f.issued = True


def emit_seg(em, seg, frags, cap, v1, Q=None, qsep=4, qmax=99):
    streams = [list(s) for s in seg.streams]
    lastgap = [-99] * len(streams)
    n = len(seg.m)
    qn = 0
    for gap, (acc, w, fr, first) in enumerate(seg.m):
        assert fr.issued, (fr.s, fr.kk)
        if fr.first == em.mi:
            em.wait_lds(("xf", fr.id))
        c = "0" if first else vr(acc)
        em.op(f"v_mfma_f32_16x16x32_bf16 {vr(acc)}, {w}, {vr(fr.buf)}, {c}")
        mi = em.mi
        em.mi += 1
        em.gapno += 1
        n_left = cap
        nxt = seg.m[gap + 1][2] if gap + 1 < n else seg.next_frag
        if nxt is not None and nxt.first == em.mi:
            n_left -= 1
        v_left = 8
        final = gap == n - 1
        while em.fnext < len(frags):
            f = frags[em.fnext]
            must = f.first == em.mi
            if (f.prev is None or f.prev.last <= mi) and em.nbar >= f.need_bar and (n_left > 0 or must):
                frag_read(em, f)
                em.fnext += 1
                n_left -= 1
                if not must and em.one_read:
                    break
            else:
                break
        if final:
            n_left = 10**6
            nd = sum(len(st) for st in streams)
            if nd:
                em.dumps.append((fr.s, fr.kk, nd))
        progress = True
        while progress and n_left > 0:
            progress = False
            if Q and Q[0].isload and em.gapno != em.lastm0 and not final and qn < qmax and v_left >= em.xcost:
                f = Q.pop(0)
                f.fn(em)
                em.lastload = em.gapno
                v_left -= em.xcost
                qn += 1
                n_left -= 1
                progress = True
                continue
            for si, st in enumerate(streams):
                if not st or n_left <= 0:
                    continue
                f = st[0]
                if not final:
                    if f.at > gap or gap < lastgap[si] + f.gapsep:
                        continue
                    cost = {"v": 8 if v1 else 4, "t": 8, "o": 0, "x": em.xcost}[f.kind]
                    if cost > v_left:
                        continue
                    v_left -= cost
                else:
                    if f.gapsep or f.kind == "v":
                        em.op("s_nop 1")
                f.fn(em)
                if final and f.kind == "x":
                    em.op("s_nop 1")
                st.pop(0)
                lastgap[si] = gap
                n_left -= 1
                progress = True
            if Q and n_left > 0 and not final and qn < qmax and not Q[0].isload:
                f = Q[0]
                ok = em.nbar >= f.need_bar
                if f.gapsep and em.gapno < em.lastload + qsep:
                    ok = False
                if ok:
                    f.fn(em)
                    Q.pop(0)
                    em.lastm0 = em.gapno
                    n_left -= 1
                    progress = True
    for st in streams:
        assert not st


def build(args, vm_override=None, linear=False):
    em = Em()
    em.vm_override = vm_override
    em.loop_it = None
    em.xcost = args.xcost1
    em.nbar = 0
    em.gapno = 0
    em.lastload = -99
    em.lastm0 = -99
    em.mi = 0
    em.fnext = 0
    em.one_read = True
    prologue(em, args)
    emit_now(em, xchunk(0, range(4)) + wload(0))
    prologue2(em)
    emit_now(em, wload(1))
    bn_loads(em)
    emit_now(em, xchunk(1, range(4)))
    B = lambda k: k + 2
    Q = []
    pre = [wload(2), wload(3)]
    for it in pre[:args.pre]:
        emit_now(em, it)
    for it in pre[args.pre:]:
        Q += it
    for kk in range(12):
        u = kk + 4
        if u % 2 == 0:
            c = u // 2
            Q += xchunk(c, range(4), B(2 * c - 6) if c >= 4 else 0)
        if u == 15:
            Q += xstage(8, B(10))
        Q += wload(u, B(kk))
        if args.cpf and kk == args.cpf1:
            Q += code_prefetch("L_steady", False)
    Q += xstage(9, B(12)) + xstage(10, B(14))

    syncs = [s for s in range(P, 31) if s < args.sy0 or s % 2 == 0]
    nb0 = 16

    frags = []
    fmap = {}
    occupant = {}

    def newfrag(s, kk, buf, need_bar):
        f = Frag(s, kk, buf, need_bar)
        f.id = len(frags)
        f.issued = False
        f.prev = occupant.get(buf)
        occupant[buf] = f
        frags.append(f)
        fmap[(s, kk)] = f
        return f
    n = 0
    for kk in range(16):
        for p in range(P):
            ring = B6 if args.ring6 else XF
            newfrag(p, kk, ring[n % len(ring)], 1 if kk == 0 else B(kk - 1) if kk % 2 == 0 else 0)
            n += 1
    for s in range(P, 31):
        if s == P:
            nb = B(14)
        else:
            cert = max(x for x in syncs if x < s)
            nb = nb0 + syncs.index(cert) + 1
        for kk in range(16):
            newfrag(s, kk, XF[kk & 3], nb)
    cert = max(syncs)
    for kk in range(16):
        newfrag(31, kk, XF[kk] if kk < 4 else E[0] + 4 * (kk - 4), nb0 + syncs.index(cert) + 1)

    started = set()
    cnt = [0]

    def add(seg, o, db, t, s, kk):
        f = fmap[(s, kk)]
        first = (o, db) not in started
        started.add((o, db))
        seg.m.append((accreg(o) + 4 * db, wreg(kk, t, db), f, first))
        if f.first is None:
            f.first = cnt[0]
        f.last = cnt[0]
        cnt[0] += 1

    p1 = []
    for kk in range(16):
        sg = Seg()
        if args.ord1:
            for o in range(P + 1):
                ts = [t for t in range(3) if 0 <= o - 1 + t < P]
                for db in range(2):
                    for t in (ts if db == 0 else ts[::-1]):
                        add(sg, o, db, t, o - 1 + t, kk)
        else:
            for p in range(P):
                for t in range(3):
                    if p + 1 - t >= 0:
                        for db in range(2):
                            add(sg, p + 1 - t, db, t, p, kk)
        p1.append(sg)
    pos = {}
    for s in range(P, 31):
        sg = Seg()
        if args.ord2:
            for k0 in range(0, 16, 2):
                j = 0
                for t in range(3):
                    for db in range(2):
                        for kk in ((k0, k0 + 1) if j % 2 == 0 else (k0 + 1, k0)):
                            add(sg, s + 1 - t, db, t, s, kk)
                        j += 1
        else:
            for kk in range(16):
                for t in range(3):
                    for db in range(2):
                        add(sg, s + 1 - t, db, t, s, kk)
        pos[s] = sg
    sg = Seg()
    for k0 in range(0, 16, 2):
        for db in range(2):
            for kk in ((k0, k0 + 1) if db == 0 else (k0 + 1, k0)):
                add(sg, 30, db, 2, 31, kk)
    for db in range(2):
        for kk in (range(16) if db == 0 else reversed(range(16))):
            add(sg, 31, db, 1, 31, kk)
    pos[31] = sg
    allsegs = p1 + [pos[s] for s in range(P, 32)]
    for a, b in zip(allsegs, allsegs[1:] + [None]):
        a.next_frag = b.m[0][2] if b else None

    bn = bn_compute_items()
    nb = (len(bn) + args.bnk - 1) // args.bnk
    for kk in range(16):
        sg = p1[kk]
        if kk < 15:
            sg.streams.append(wstage_items(kk + 1, args.a_w, args.a_done))
        if args.bn0 <= kk < args.bnk + args.bn0:
            it, bn = bn[:nb], bn[nb:]
            sg.streams.append(it)
    assert not bn

    it = wstage_items(0, 0, 0)
    emit_now(em, it[:-1])
    for f in frags[:(5 if args.ring6 else 3)]:
        frag_read(em, f)
        em.fnext += 1
    emit_now(em, it[-1:])
    if args.stamp:
        em.op("s_memtime s[50:51]")
        em.op("s_memrealtime s[58:59]")

    for st in range(11, LOOP0 + 6):
        first_ok = min(s for s in syncs if s >= max(st - 7, P))
        Q += xstage(st, nb0 + syncs.index(first_ok) + 1)
        if args.cpf and st == args.cpf2:
            Q += code_prefetch("L_loop", True)
        if args.cpf and st == 13:
            Q += code_prefetch("L_steady+16384", True)
    halves = [(o, h) for o in range(P - 2) for h in range(2)]
    for s in range(P, 32):
        ep = []
        if halves:
            o, h = halves.pop(0)
            ep += epilogue_ops(o, args, half=h, at=(args.a_ep if s == P else args.a_h))
        ep += epilogue_ops(s - 2, args, at=args.a_ep)
        sy = []
        if s in syncs:
            later = [x for x in syncs if x > s]
            need = later[0] if later else 31
            site = (s & 3) if s >= LOOP0 else None
            sy.append(F(lambda em, need=need, site=site: em.wait_vm(("x", need), site=site), "o", at=args.a_sync))
            sy.append(F(barrier, "x"))
        if s == 31:
            ep[0].at = args.a_ep
            ep += epilogue_ops(30, args, at=40)
            ep += epilogue_ops(31, args, at=56, half=0)
        pos[s].streams = [sy, ep]
        if LOOP0 <= s < 31:
            pos[s].Q = xstage_loop(s, s + 6, nb0 + len([x for x in syncs if x <= s]))
    assert not halves

    for kk in range(16):
        if args.fine == 1:
            em.op(f"s_memtime s[{68+2*kk}:{69+2*kk}]")
        emit_seg(em, p1[kk], frags, args.cap1, False, Q, args.qsep1)
    if args.fine == 1:
        em.op(f"s_memtime s[100:101]")
    if args.stamp:
        em.op("s_memtime s[52:53]")
        em.op("s_memrealtime s[60:61]")
    em.label("L_steady")
    em.xcost = args.xcost
    for s in range(P, LOOP0):
        if args.fine == 2:
            em.op(f"s_memtime s[{68+2*(s-P)}:{69+2*(s-P)}]")
        emit_seg(em, pos[s], frags, args.cap, args.v1, Q, args.qsep, args.qmax0)
    assert not Q, len(Q)
    if args.fine == 2:
        em.op(f"s_memtime s[{68+2*(LOOP0-P)}:{69+2*(LOOP0-P)}]")
    assert LOOP0 & 4
    em.op(f"s_mov_b32 s{sMb}, s{sM0}")
    em.op(f"s_add_u32 s{sMa}, s{sM0}, 0x10000")
    em.op(f"v_swap_b32 v{vXr}, v{vXr2}")
    em.op(f"s_mov_b32 s{sXo}, {(LOOP0+5)*1024}")
    em.op(f"s_mov_b32 s{sOo}, {(LOOP0-3)*1024}")
    em.op(f"s_mov_b32 s{sCnt}, 0")

    n31 = fmap[(31, 0)].id
    loopfr = frags[:n31 + 4]

    def seg(s):
        q = list(pos[s].Q)
        emit_seg(em, pos[s], loopfr, args.cap, args.v1, q, args.qsep)
        assert not q

    def flip():
        em.op(f"v_swap_b32 v{vXr}, v{vXr2}")
        em.op(f"s_xor_b32 s{sMa}, s{sMa}, 0x10000")
        em.op(f"s_xor_b32 s{sMb}, s{sMb}, 0x10000")

    em.label("L_loop")
    if linear:
        for s in range(LOOP0, 31):
            em.loop_it = (s - LOOP0) // 4
            seg(s)
            if s % 4 == 3:
                flip()
    else:
        em.loop_it = 0
        entry = ([t[1] for t in em.lds], em.fnext)
        for s in range(LOOP0, LOOP0 + 3):
            seg(s)
        em.op(f"s_cmp_eq_u32 s{sCnt}, {(32-LOOP0)//4-1}")
        em.op("s_cbranch_scc1 L_tail")
        saved = (list(em.lds), list(em.vm), em.fnext, em.mi, em.nbar)
        seg(LOOP0 + 3)
        flip()
        em.op(f"s_add_u32 s{sCnt}, s{sCnt}, 1")
        em.op("s_branch L_loop")
        assert [t[1] - 64 for t in em.lds] == entry[0] and em.fnext - 64 == entry[1], (em.lds, entry)
        em.label("L_tail")
        d = (28 - LOOP0) * 16
        em.lds = [(t[0], t[1] + d) for t in saved[0]]
        em.vm = saved[1]
        em.fnext = saved[2] + d
        assert n31 < em.fnext <= n31 + 4, (em.fnext, n31)
        em.mi = saved[3] + (28 - LOOP0) * 96
        em.nbar = 10**6
        for f in frags[:em.fnext]:
            f.issued = True
    em.loop_it = (31 - LOOP0) // 4
    if args.fine == 2:
        em.op(f"s_memtime s[{70+2*(LOOP0-P)}:{71+2*(LOOP0-P)}]")
    em.one_read = False
    pos[31].streams = [pos[31].streams[1]]
    tail = pos[31]
    rest = epilogue_ops(31, args, half=1)
    st = tail.streams[0]
    tail.streams = [st]
    emit_tail(em, tail, frags, rest)
    if args.fine == 2:
        em.op(f"s_memtime s[{72+2*(LOOP0-P)}:{73+2*(LOOP0-P)}]")
    finish(em, args)
    return em


def emit_tail(em, seg, frags, rest):
    st = list(seg.streams[0])
    last = -99
    for gap, (acc, w, fr, first) in enumerate(seg.m):
        while em.fnext < len(frags) and (frags[em.fnext].prev is None or frags[em.fnext].prev.last < em.mi) and len(em.lds) < 14:
            frag_read(em, frags[em.fnext])
            em.fnext += 1
        if fr.first == em.mi:
            em.wait_lds(("xf", fr.id))
        em.op(f"v_mfma_f32_16x16x32_bf16 {vr(acc)}, {w}, {vr(fr.buf)}, {vr(acc)}")
        em.mi += 1
        v_left = 8
        while st and st[0].at <= gap and gap >= last + st[0].gapsep:
            cost = {"v": 4, "t": 8, "o": 0, "x": 8}[st[0].kind]
            if cost > v_left:
                break
            v_left -= cost
            st.pop(0).fn(em)
            last = gap
    if st:
        em.dumps.append(("tail", len(st)))
    for f in st:
        if f.gapsep:
            em.op("s_nop 1")
        f.fn(em)
    if len(st) < 8:
        em.op(f"s_nop {7 - len(st)}")
    for f in rest:
        if f.gapsep:
            em.op("s_nop 1")
        f.fn(em)


def finish(em, args):
    if args.stamp:
        em.op("s_waitcnt vmcnt(0) lgkmcnt(0)")
        em.op("s_memtime s[54:55]")
        em.op("s_memrealtime s[62:63]")
        em.op("s_waitcnt lgkmcnt(0)")
        em.op("s_lshl_b32 s3, s2, 3")
        em.op(f"s_add_u32 s3, s3, s{sWave}")
        em.op("s_lshl_b32 s3, s3, 6")
        em.op("v_mov_b32 v0, s3")
        for i in range(16):
            em.op(f"v_mov_b32 v{4+i}, s{48+i}")
        for i in range(4):
            em.op(f"global_store_dwordx4 v0, v[{4+4*i}:{7+4*i}], s[46:47] offset:{16*i}")
        if args.fine:
            em.op("v_add_u32 v0, 0x100000, v0")
            em.op("v_lshlrev_b32 v0, 1, v0")
            for i in range(17):
                em.op(f"v_mov_b32 v{4+i}, s{68+2*i}")
            for i in range(5):
                em.op(f"global_store_dwordx4 v0, v[{4+4*i}:{7+4*i}], s[46:47] offset:{16*i}")
    em.label("L_end")
    em.op("s_endpgm")
    em.label("L_code_end")


def main():
    ap = argparse.ArgumentParser()
    ap.add_argument("-o", default="standalone__batchnorm__sampling.s")
    for k, d in dict(pre=1, a_w=22, a_done=43, a_ep=8, a_sync=1, cap=2, cap1=2, qsep1=3, qsep=2, qmax0=6, bnk=6, bn0=1, sy0=10, v1=1,
                     rot=1, cpf=1, cpf1=6, cpf2=21, xcost=8, xcost1=0, a_h=0, map=0, stamp=0, fine=0, ord1=1, ord2=1, ring6=1).items():
        ap.add_argument("--" + k, type=int, default=d)
    ap.add_argument("--stmod", type=str, default=" nt")
    args = ap.parse_args()
    tr = build(args, linear=True)
    em = build(args, vm_override=tr.vm_sites)
    out = HEADER
    out += '.amdgcn_target "amdgcn-amd-amdhsa--gfx950"\n.text\n'
    out += f".globl {NAME}\n.p2align 8\n.type {NAME},@function\n{NAME}:\n"
    out += "\n".join(em.lines) + "\n"
    out += f""".section .rodata,"a"
.p2align 6
.amdhsa_kernel {NAME}
  .amdhsa_next_free_vgpr 512
  .amdhsa_next_free_sgpr 102
  .amdhsa_accum_offset 256
  .amdhsa_group_segment_fixed_size 0
  .amdhsa_kernarg_size 72
  .amdhsa_user_sgpr_count 2
  .amdhsa_user_sgpr_kernarg_segment_ptr 1
  .amdhsa_system_sgpr_workgroup_id_x 1
.end_amdhsa_kernel
"""
    open(args.o, "w").write(out)
    print("sites", tr.vm_sites, "lines", len(em.lines), "dumps", em.dumps, file=sys.stderr)


if __name__ == "__main__":
    main()
```

```python
import sys, argparse
from gen2 import HEADER, NAME, Em, Group, Segment, vr, wreg

P = 8
R = [8, 16, 24, 32]
E = [40, 48, 56, 64, 72, 80]
XF = [88, 92, 96, 100]
SC, SH = 104, 112
TMP = [120, 121, 122, 123, 124, 125, 126, 127]
vWg, vWr0, vWr1, vXp, vXq = 123, 124, 125, 126, 127
vWr0b, vWr1b = 121, 122
vXr, vXr2, vO = 1, 2, 3
vXd = [4, 5, 6, 7]
BNR = 208
BNT = 224

sX, sW, sO = 8, 12, 16
sWave, sM0, sTmp, sC, sTmp2, sTmp3, sM0q = 20, 21, 23, 28, 29, 22, 26
sWc = [24, 25, 30, 31]
sMa, sMb, sXo, sOo, sCnt = 36, 37, 38, 39, 40
LOOP0 = 20
sXc = [32, 33, 34, 35]
WS = 16384
XSB = [0, 65536, 81920, 98304]
WSB = [16384, 40960, 114688, 139264]
vXp2 = 120
WB = 24576
WT = 8192


class F:
    def __init__(self, fn, kind="o", at=0, gapsep=0, need_bar=0, isload=False):
        self.fn, self.kind, self.at, self.gapsep, self.need_bar, self.isload = fn, kind, at, gapsep, need_bar, isload


def accreg(o):
    return E[o] if o <= P - 3 else R[o & 3]


def issue_read(em, g):
    if g.s < P:
        a = ((g.kk >> 1) & 3) * 16384 + g.s * 2048 + (g.kk & 1) * 512
        em.ldsop(f"ds_read_b128 {vr(XF[g.idx & 3])}, v{vXp} offset:{a}", ("xf", g.idx))
    else:
        a = (g.s & 7) * 16384 + (g.kk >> 2) * 4096 + (g.kk & 3) * 256
        base = vXr2 if a >= 65536 else vXr
        if em.loop_it is not None:
            base = vXr if (g.s - LOOP0) // 4 == em.loop_it else vXr2
        em.ldsop(f"ds_read_b128 {vr(XF[g.idx & 3])}, v{base} offset:{a & 65535}", ("xf", g.idx))


def epilogue_ops(o, args, at=0, half=None):
    a = accreg(o)
    rs = range(8) if half is None else range(4 * half, 4 * half + 4)
    L = []
    for r in rs:
        L.append(F(lambda em, r=r: em.op(f"v_fma_f32 v{a+r}, v{a+r}, v{SC+r}, v{SH+r}"), "v"))
    for r in rs:
        L.append(F(lambda em, r=r: em.op(f"v_exp_f32 v{TMP[r]}, v{a+r}"), "t"))
    for r in rs:
        L.append(F(lambda em, r=r: em.op(f"v_fma_f32 v{TMP[r]}, v{TMP[r]}, s{sC}, s{sC}"), "v"))
    for r in rs:
        L.append(F(lambda em, r=r: em.op(f"v_rcp_f32 v{TMP[r]}, v{TMP[r]}"), "t"))
    for r in rs:
        L.append(F(lambda em, r=r: em.op(f"v_mul_f32 v{a+r}, v{a+r}, v{TMP[r]}"), "v"))
    for r in rs[::2]:
        L.append(F(lambda em, r=r: em.op(f"v_cvt_pk_bf16_f32 v{a+r//2}, v{a+r}, v{a+r+1}"), "v"))
    if half in (None, 1):
        L.append(F(lambda em: em.op(f"v_permlane16_swap_b32 v{a}, v{a+2}"), "v", gapsep=2))
        L.append(F(lambda em: em.op(f"v_permlane16_swap_b32 v{a+1}, v{a+3}"), "v", gapsep=1))
        if o + 2 >= LOOP0 and o < 30:
            L.append(F(lambda em: em.op(f"s_add_u32 s{sOo}, s{sOo}, 1024"), "o"))
            L.append(F(lambda em: em.vmop(f"buffer_store_dwordx4 {vr(a)}, v{vO}, s[{sO}:{sO+3}], s{sOo} offen{args.stmod}", ("st", o)), "x", gapsep=1))
        else:
            L.append(F(lambda em: em.op(f"s_mov_b32 s{sTmp3}, {o*1024}"), "o"))
            L.append(F(lambda em: em.vmop(f"buffer_store_dwordx4 {vr(a)}, v{vO}, s[{sO}:{sO+3}], s{sTmp3} offen{args.stmod}", ("st", o)), "x", gapsep=1))
    L[0].at = at
    return L


def barrier(em):
    em.op("s_barrier")
    em.nbar += 1


def emit_segment(em, seg, nxt, PF, cap, v1, Q=None, qsep=4, qmax=99):
    allg = seg.groups + nxt
    streams = [list(s) for s in seg.streams]
    lastgap = [-99] * len(streams)
    gap = 0
    ngaps = sum(len(g.mfmas) for g in seg.groups)
    qn = 0
    for i, g in enumerate(seg.groups):
        if i + PF < len(allg):
            issue_read(em, allg[i + PF])
        em.wait_lds(("xf", g.idx))
        nm = len(g.mfmas)
        for j, (acc, w, first) in enumerate(g.mfmas):
            c = "0" if first else vr(acc)
            em.op(f"v_mfma_f32_16x16x32_bf16 {vr(acc)}, {w}, {vr(XF[g.idx & 3])}, {c}")
            em.gapno += 1
            n_left = max(cap - 2, 0) if j == nm - 1 else cap
            v_left = 8
            final = gap == ngaps - 1
            if final:
                n_left = 10**6
                nd = sum(len(st) for st in streams)
                if nd:
                    em.dumps.append((g.s, g.kk, nd))
            progress = True
            while progress and n_left > 0:
                progress = False
                if Q and Q[0].isload and em.gapno != em.lastm0 and not final and qn < qmax and v_left >= em.xcost and em.qfirst:
                    f = Q.pop(0)
                    f.fn(em)
                    em.lastload = em.gapno
                    v_left -= em.xcost
                    qn += 1
                    n_left -= 1
                    progress = True
                    continue
                for si, st in enumerate(streams):
                    if not st or n_left <= 0:
                        continue
                    f = st[0]
                    if not final:
                        if f.at > gap or gap < lastgap[si] + f.gapsep:
                            continue
                        cost = {"v": 8 if v1 else 4, "t": 8, "o": 0, "x": em.xcost}[f.kind]
                        if cost > v_left:
                            continue
                        v_left -= cost
                    else:
                        if f.gapsep or f.kind == "v":
                            em.op("s_nop 1")
                    f.fn(em)
                    st.pop(0)
                    lastgap[si] = gap
                    n_left -= 1
                    progress = True
                if Q and n_left > 0 and not final and qn < qmax:
                    f = Q[0]
                    ok = em.nbar >= f.need_bar
                    if f.gapsep and em.gapno < em.lastload + qsep:
                        ok = False
                    if f.isload and em.gapno == em.lastm0:
                        ok = False
                    if f.isload and v_left < em.xcost:
                        ok = False
                    if ok:
                        f.fn(em)
                        Q.pop(0)
                        if f.isload:
                            em.lastload = em.gapno
                            v_left -= em.xcost
                            qn += 1
                        else:
                            em.lastm0 = em.gapno
                        n_left -= 1
                        progress = True
            gap += 1
    for st in streams:
        assert not st


def tail_segment(em, seg, args):
    g0 = seg.groups[0].idx
    regs = {}
    for kk in range(16):
        regs[kk] = XF[(g0 + kk) & 3] if kk < 4 else E[0] + 4 * (kk - 4)
    for kk in range(args.PF, 16):
        a = 3 * 16384 + (kk >> 2) * 4096 + (kk & 3) * 256
        em.ldsop(f"ds_read_b128 {vr(regs[kk])}, v{vXr} offset:{a}", ("xf", g0 + kk))
    st = list(seg.streams[1])
    last = -99
    gap = 0
    for i, g in enumerate(seg.groups):
        if i < 16:
            em.wait_lds(("xf", g0 + i))
        for (acc, w, first) in g.mfmas:
            em.op(f"v_mfma_f32_16x16x32_bf16 {vr(acc)}, {w}, {vr(regs[g.kk])}, {vr(acc)}")
            v_left = 8
            while st and st[0].at <= gap and gap >= last + st[0].gapsep:
                cost = {"v": 4, "t": 8, "o": 0, "x": 8}[st[0].kind]
                if cost > v_left:
                    break
                v_left -= cost
                st.pop(0).fn(em)
                last = gap
            gap += 1
    if st:
        em.dumps.append(("tail", len(st)))
    for f in st:
        if f.gapsep:
            em.op("s_nop 1")
        f.fn(em)


def dma(srd, voff, m0expr, soffexpr, tag, need_bar):
    def pre(em):
        em.op(f"s_add_u32 m0, {m0expr}")
        if soffexpr:
            em.op(soffexpr)
    return [F(pre, "o", gapsep=1, need_bar=need_bar),
            F(lambda em: em.vmop(f"buffer_load_dwordx4 v{voff}, s[{srd}:{srd+3}], s{sTmp2} offen lds", tag), "o", isload=True)]


def xchunk(c, ii, need_bar=0):
    L = []
    for i in ii:
        L += dma(sX, vXq, f"s{sM0q}, {XSB[c & 3] + i*2048}",
                 f"s_add_u32 s{sTmp2}, s{sXc[c>>1]}, {i*1024 + (c&1)*128}", ("xc", c), need_bar)
    return L


def xstage(st, need_bar=0):
    L = []
    for c4 in range(4):
        L += dma(sX, vXd[c4], f"s{sM0}, {(st & 7)*16384 + c4*4096}",
                 f"s_mov_b32 s{sTmp2}, {st*1024}" if c4 == 0 else None, ("x", st), need_bar)
    return L


def xstage_loop(s, st, need_bar=0):
    same = (st - LOOP0) // 4 % 2 == (s - LOOP0) // 4 % 2
    sm = sMa if same else sMb
    L = []

    def adv(em):
        em.op(f"s_add_u32 s{sXo}, s{sXo}, 1024")
        em.op(f"s_cmp_lt_u32 s{sXo}, 32768")
        em.op(f"s_cselect_b32 s{sTmp2}, s{sXo}, 0x100000")
    L.append(F(adv, "o", need_bar=need_bar))
    for c4 in range(4):
        L += dma(sX, vXd[c4], f"s{sm}, {(st & 3)*16384 + c4*4096}", None, ("x", st), need_bar)
    return L


def code_prefetch(label, lds):
    if lds:
        def pre(em):
            em.op(f"s_add_u32 m0, s{sM0}, 131072")
            em.op(f"s_mov_b32 s{sTmp2}, {label}-L_pc")
        return [F(pre, "o", gapsep=1),
                F(lambda em: em.vmop(f"buffer_load_dword v0, s[64:67], s{sTmp2} offen lds", "cpf"), "o", isload=True)]
    return [F(lambda em: em.op(f"s_mov_b32 s{sTmp2}, {label}-L_pc"), "o", gapsep=1),
            F(lambda em: em.vmop(f"buffer_load_dword v254, v0, s[64:67], s{sTmp2} offen", "cpf"), "o", isload=True)]


def wload(kk, need_bar=0):
    L = []
    for t in range(3):
        for h in range(2):
            L += dma(sW, vWg, f"s{sM0}, {WSB[kk & 3] + t*WT + h*4096}",
                     f"s_add_u32 s{sTmp2}, s{sWc[kk>>2]}, {t*524288 + (kk&3)*32768 + h*16384}", ("w", kk), need_bar)
    return L


def bn_loads(em):
    for k, sp in enumerate((36, 38, 40, 42)):
        em.vmop(f"global_load_dwordx2 v[{BNR+4*k}:{BNR+4*k+1}], v{BNT}, s[{sp}:{sp+1}]", "bn")
        em.vmop(f"global_load_dwordx2 v[{BNR+4*k+2}:{BNR+4*k+3}], v{BNT}, s[{sp}:{sp+1}] offset:32", "bn")


def bn_compute_items():
    L = [F(lambda em: em.wait_vm("bn"), "o")]
    v = lambda s: L.append(F(lambda em: em.op(s), "v"))
    t = lambda s: L.append(F(lambda em: em.op(s), "t"))
    M, G, PK = BNT, BNT + 8, BNT + 16
    raw = lambda k, i: BNR + 4 * k + i
    for i in range(4):
        v(f"v_lshlrev_b32 v{SC+2*i}, 16, v{raw(1,i)}")
        v(f"v_and_b32 v{SC+2*i+1}, 0xffff0000, v{raw(1,i)}")

    def rnd():
        for i in range(4):
            v(f"v_cvt_pk_bf16_f32 v{PK+i}, v{SC+2*i}, v{SC+2*i+1}")
        for i in range(4):
            v(f"v_lshlrev_b32 v{SC+2*i}, 16, v{PK+i}")
            v(f"v_and_b32 v{SC+2*i+1}, 0xffff0000, v{PK+i}")
    for r in range(8):
        v(f"v_add_f32 v{SC+r}, 0x3727c5ac, v{SC+r}")
    rnd()
    for r in range(8):
        t(f"v_sqrt_f32 v{SC+r}, v{SC+r}")
    for i in range(4):
        v(f"v_lshlrev_b32 v{G+2*i}, 16, v{raw(2,i)}")
        v(f"v_and_b32 v{G+2*i+1}, 0xffff0000, v{raw(2,i)}")
    rnd()
    for r in range(8):
        t(f"v_rcp_f32 v{SC+r}, v{SC+r}")
    for i in range(4):
        v(f"v_lshlrev_b32 v{M+2*i}, 16, v{raw(0,i)}")
        v(f"v_and_b32 v{M+2*i+1}, 0xffff0000, v{raw(0,i)}")
    rnd()
    for r in range(8):
        v(f"v_mul_f32 v{SC+r}, v{SC+r}, v{G+r}")
    for i in range(4):
        v(f"v_lshlrev_b32 v{SH+2*i}, 16, v{raw(3,i)}")
        v(f"v_and_b32 v{SH+2*i+1}, 0xffff0000, v{raw(3,i)}")
    rnd()
    for r in range(8):
        v(f"v_fma_f32 v{SH+r}, -v{M+r}, v{SC+r}, v{SH+r}")
    for r in range(8):
        v(f"v_mul_f32 v{SC+r}, s{sC}, v{SC+r}")
    for r in range(8):
        v(f"v_mul_f32 v{SH+r}, s{sC}, v{SH+r}")
    return L


def wstage_items(kk, a_w, a_done):
    b = (kk & 1) * WB
    rd = (vWr0b, vWr1b) if kk & 2 else (vWr0, vWr1)
    L = [F(lambda em: em.wait_vm(("w", kk)), "o", at=a_w),
         F(barrier, "o")]
    for t in range(3):
        for db in range(2):
            for h in range(2):
                off = b + t * WT + h * 1024
                L.append(F(lambda em, t=t, db=db, h=h, off=off: em.ldsop(
                    f"ds_read_b64_tr_b16 {wreg(kk,t,db,2*h,2)}, v{rd[db]} offset:{off}", ("wr", kk)), "o", gapsep=1))
    L.append(F(lambda em: em.wait_lds(("wr", kk)), "o", at=a_done))
    return L


def emit_now(em, items):
    for f in items:
        if f.isload:
            em.op("s_nop 0")
        f.fn(em)


def prologue(em, args):
    em.op("s_cmp_ge_u32 s2, 256")
    em.op("s_cbranch_scc1 L_end")
    em.op("s_load_dwordx8 s[32:39], s[0:1], 0")
    em.op("s_load_dwordx4 s[40:43], s[0:1], 32")
    em.op("s_load_dwordx2 s[44:45], s[0:1], 48")
    if args.stamp:
        em.op(f"s_load_dwordx2 s[46:47], s[0:1], {56 if args.stamp == 2 else 64}")
        em.op("s_memtime s[48:49]")
        em.op("s_memrealtime s[56:57]")
    if args.cpf:
        em.op("s_getpc_b64 s[64:65]")
        em.label("L_pc")
        em.op("s_and_b32 s65, s65, 0xffff")
        em.op("s_mov_b32 s66, L_code_end-L_pc")
        em.op("s_mov_b32 s67, 0x00020000")
    em.op("v_lshrrev_b32 v12, 6, v0")
    em.op("v_and_b32 v11, 63, v0")
    em.op("v_lshlrev_b32 v0, 6, v0")
    if args.cpf:
        em.vmop("buffer_load_dword v255, v0, s[64:67], 0 offen", "cpf")
    em.op(f"v_readfirstlane_b32 s{sWave}, v12")
    if args.map == 0:
        em.op("s_and_b32 s3, s2, 7")
        em.op("s_lshr_b32 s4, s2, 3")
        em.op("s_and_b32 s5, s4, 3")
        em.op("s_lshr_b32 s4, s4, 2")
    else:
        em.op("s_lshr_b32 s3, s2, 5")
        em.op("s_and_b32 s5, s2, 3")
        em.op("s_bfe_u32 s4, s2, 0x30002")
    if args.rot == 1:
        em.op("s_add_u32 s6, s4, s3")
        em.op("s_and_b32 s6, s6, 3")
    elif args.rot == 2:
        em.op("s_and_b32 s6, s3, 3")
    elif args.rot == 3:
        em.op("s_lshl_b32 s6, s4, 1")
        em.op("s_add_u32 s6, s6, s3")
        em.op("s_and_b32 s6, s6, 3")
    elif args.rot == 4:
        em.op("s_lshr_b32 s6, s3, 1")
    else:
        em.op("s_mov_b32 s6, 0")
    em.op("s_lshl_b32 s3, s3, 3")
    em.op("s_add_u32 s3, s3, s4")
    em.op("s_lshl_b32 s3, s3, 19")
    em.op("s_lshl_b32 s5, s5, 8")
    for c4 in range(4):
        em.op(f"s_add_u32 s7, s6, {c4}")
        em.op("s_and_b32 s7, s7, 3")
        em.op(f"s_lshl_b32 s{sWc[c4]}, s7, 17")
    em.op("v_and_b32 v13, 15, v11")
    em.op("v_lshrrev_b32 v14, 4, v11")
    em.op(f"s_and_b32 s7, s{sWave}, 1")
    em.op("s_mul_i32 s4, s7, 3")
    em.op("v_and_b32 v17, 3, v11")
    em.op("v_xor_b32 v16, s4, v17")
    em.op("v_lshlrev_b32 v16, 4, v16")
    em.op("v_lshrrev_b32 v15, 5, v11")
    em.op("v_lshl_add_u32 v16, v15, 6, v16")
    em.op("v_bfe_u32 v15, v11, 2, 3")
    em.op("v_lshl_add_u32 v16, v15, 15, v16")
    em.op("s_lshl_b32 s4, s7, 18")
    em.op(f"v_add_u32 v{vXq}, s4, v16")
    em.op(f"s_lshr_b32 s4, s{sWave}, 1")
    em.op(f"s_lshl_b32 s{sM0q}, s4, 13")
    em.op("s_lshl_b32 s7, s7, 10")
    em.op(f"s_add_u32 s{sM0q}, s{sM0q}, s7")
    em.op("s_lshl_b32 s27, s4, 12")
    em.op("s_lshl_b32 s4, s4, 2")
    em.op("v_add_u32 v16, s4, v14")
    em.op("v_lshrrev_b32 v15, 1, v13")
    em.op("v_xor_b32 v16, v16, v15")
    em.op("v_lshlrev_b32 v16, 5, v16")
    em.op("v_and_b32 v15, 1, v13")
    em.op("v_lshl_add_u32 v16, v15, 4, v16")
    em.op("v_lshl_add_u32 v16, v14, 10, v16")
    em.op(f"s_lshl_b32 s7, s{sWave}, 12")
    em.op(f"v_add_u32 v{vWg}, s7, v16")
    em.op(f"s_lshl_b32 s{sM0}, s{sWave}, 10")
    em.op(f"s_mov_b32 s{sC}, 0xbfb8aa3b")
    em.op("s_waitcnt lgkmcnt(0)")
    em.op(f"s_add_u32 s{sX}, s32, s3")
    em.op(f"s_addc_u32 s{sX+1}, s33, 0")
    em.op(f"s_mov_b32 s{sX+2}, 524288")
    em.op(f"s_mov_b32 s{sX+3}, 0x00020000")
    em.op(f"s_add_u32 s{sW}, s34, s5")
    em.op(f"s_addc_u32 s{sW+1}, s35, 0")
    em.op(f"s_sub_u32 s{sW+2}, 1572864, s5")
    em.op(f"s_mov_b32 s{sW+3}, 0x00020000")
    for c4 in range(4):
        em.op(f"s_lshr_b32 s4, s{sWc[c4]}, 9")
        em.op(f"s_add_u32 s{sXc[c4]}, s4, s27")


def prologue2(em):
    em.op("s_add_u32 s3, s3, s5")
    em.op(f"s_add_u32 s{sO}, s44, s3")
    em.op(f"s_addc_u32 s{sO+1}, s45, 0")
    em.op(f"s_sub_u32 s{sO+2}, 524288, s5")
    em.op(f"s_mov_b32 s{sO+3}, 0x00020000")
    em.op(f"s_lshr_b32 s7, s{sWave}, 1")
    em.op("s_mul_i32 s7, s7, 3")
    em.op("v_xor_b32 v17, s7, v17")
    em.op("v_lshlrev_b32 v17, 4, v17")
    em.op("v_lshl_add_u32 v17, v14, 6, v17")
    em.op("v_bfe_u32 v16, v11, 2, 2")
    em.op("v_lshl_add_u32 v17, v16, 15, v17")
    em.op(f"s_lshl_b32 s7, s{sWave}, 17")
    em.op("v_add_u32 v17, s7, v17")
    for c4 in range(4):
        em.op(f"s_lshr_b32 s7, s{sWc[c4]}, 9")
        em.op(f"v_add_u32 v{vXd[c4]}, s7, v17")
    em.op(f"s_lshl_b32 s7, s{sWave}, 6")
    em.op("s_add_u32 s4, s7, s5")
    em.op("v_lshlrev_b32 v16, 3, v14")
    em.op(f"v_add_u32 v{BNT}, s4, v16")
    em.op("v_lshrrev_b32 v15, 3, v13")
    em.op("v_mul_u32_u24 v17, 3, v15")
    em.op("v_xor_b32 v17, v14, v17")
    em.op("v_lshlrev_b32 v17, 4, v17")
    em.op("v_lshl_add_u32 v18, v15, 10, v17")
    em.op("v_and_b32 v16, 7, v13")
    em.op(f"v_lshl_add_u32 v{vXp}, v16, 6, v18")
    em.op("v_lshrrev_b32 v16, 2, v13")
    em.op("v_lshl_add_u32 v17, v16, 10, v17")
    em.op("v_and_b32 v16, 3, v13")
    em.op(f"v_lshl_add_u32 v{vXr}, v16, 6, v17")
    em.op(f"v_add_u32 v{vXr2}, 0x10000, v{vXr}")
    em.op("v_lshrrev_b32 v16, 2, v13")
    em.op("v_and_b32 v17, 1, v14")
    em.op("v_lshl_add_u32 v17, v17, 2, v16")
    em.op(f"s_lshl_b32 s3, s{sWave}, 1")
    em.op("v_xor_b32 v17, s3, v17")
    em.op("v_lshlrev_b32 v17, 5, v17")
    em.op("v_lshl_add_u32 v16, v14, 3, v16")
    em.op("v_lshl_add_u32 v17, v16, 8, v17")
    em.op("v_and_b32 v16, 3, v11")
    em.op("v_lshl_add_u32 v17, v16, 3, v17")
    em.op(f"v_add_u32 v{vWr0}, {WS}, v17")
    em.op(f"v_xor_b32 v{vWr1}, 32, v{vWr0}")
    em.op(f"v_add_u32 v{vWr0b}, {WSB[2]-WSB[0]}, v{vWr0}")
    em.op(f"v_add_u32 v{vWr1b}, {WSB[2]-WSB[0]}, v{vWr1}")
    em.op(f"v_add_u32 v{vXp2}, 0x10000, v{vXp}")
    em.op("v_and_b32 v16, 1, v14")
    em.op("v_lshlrev_b32 v16, 5, v16")
    em.op("v_lshrrev_b32 v17, 1, v14")
    em.op("v_lshl_add_u32 v16, v17, 4, v16")
    em.op("v_lshl_add_u32 v16, v13, 15, v16")
    em.op(f"v_add_u32 v{vO}, s7, v16")


def build(args, vm_override=None, linear=False):
    em = Em()
    em.vm_override = vm_override
    em.loop_it = None
    em.xcost = args.xcost1
    em.qfirst = True
    em.nbar = 0
    em.gapno = 0
    em.lastload = -99
    em.lastm0 = -99
    prologue(em, args)
    emit_now(em, (wload(0) + xchunk(0, range(4)) + [F(lambda em: em.vm.append(("w", 0)) if False else None)]) if args.w0first else (xchunk(0, range(4)) + wload(0)))
    def touch_x(em):
        em.op("v_lshlrev_b32 v18, 7, v11")
        em.op(f"s_lshr_b32 s4, s5, 6")
        em.op(f"s_add_u32 s4, s4, s{sWave}")
        em.op("s_lshl_b32 s4, s4, 15")
        em.vmop(f"buffer_load_dword v254, v18, s[{sX}:{sX+3}], s4 offen", "touch")

    def touch_w(em):
        em.op("v_lshlrev_b32 v18, 7, v11")
        em.op("s_lshr_b32 s4, s2, 3")
        em.op("s_lshl_b32 s4, s4, 2")
        em.op(f"s_add_u32 s4, s4, s{sWave}")
        em.op("s_lshl_b32 s4, s4, 13")
        em.op("s_sub_u32 s4, s4, s5")
        em.vmop(f"buffer_load_dword v253, v18, s[{sW}:{sW+3}], s4 offen", "touch")
        em.op("s_add_u32 s4, s4, 0x100000")
        em.vmop(f"buffer_load_dword v252, v18, s[{sW}:{sW+3}], s4 offen", "touch")
    if args.touch & 1:
        touch_x(em)
    if args.touch & 2:
        touch_w(em)
    prologue2(em)
    emit_now(em, wload(1))
    if not args.bnlate:
        bn_loads(em)
    emit_now(em, xchunk(1, range(4)))
    B = lambda k: k + 2
    Q = []
    if args.xlate:
        pre = [wload(2), wload(3)]
        for it in pre[:args.pre]:
            emit_now(em, it)
        for it in pre[args.pre:]:
            Q += it
        if args.bnlate:
            Q.append(F(bn_loads, "o", isload=True))
        for kk in range(12):
            u = kk + 4
            if u % 2 == 0:
                c = u // 2
                Q += xchunk(c, range(4), B(2 * c - 6) if c >= 4 else 0)
            if u == 15:
                Q += xstage(8, B(10))
            Q += wload(u, B(kk))
            if args.cpf and kk == args.cpf1:
                Q += code_prefetch("L_steady", False)
    else:
        pre = [wload(2), xchunk(2, range(4)), wload(3)]
        for it in pre[:args.pre]:
            emit_now(em, it)
        for it in pre[args.pre:]:
            Q += it
        for kk in range(12):
            c = (kk + 6) // 2
            if c <= 7:
                Q += xchunk(c, (0, 1) if kk % 2 == 0 else (2, 3), B(2 * c - 6) if c >= 4 else 0)
            if kk + 4 == 15:
                Q += xstage(8, B(10))
            Q += wload(kk + 4, B(kk))
            if args.cpf and kk == args.cpf1:
                Q += code_prefetch("L_steady", False)
    Q += xstage(9, B(12)) + xstage(10, B(14))

    groups = []
    started = set()

    def mk(s, kk, taps=(0, 1, 2)):
        m = []
        for t in taps:
            o = s + 1 - t
            if o < 0 or o > 31:
                continue
            first = o not in started
            started.add(o)
            for db in range(2):
                m.append((accreg(o) + 4 * db, wreg(kk, t, db), first))
        g = Group(s, kk, m)
        g.idx = len(groups)
        groups.append(g)
        return g

    p1 = [Segment([mk(p, kk) for p in range(P)]) for kk in range(16)]
    pos = {s: Segment([mk(s, kk) for kk in range(16)]) for s in range(P, 31)}
    pos[31] = Segment([mk(31, kk, (2,)) for kk in range(16)] + [mk(31, kk, (1,)) for kk in range(16)])

    bn = bn_compute_items()
    nb = (len(bn) + args.bnk - 1) // args.bnk
    for kk in range(16):
        sg = p1[kk]
        if kk < 15:
            sg.streams.append(wstage_items(kk + 1, args.a_w, args.a_done))
        if args.bn0 <= kk < args.bnk + args.bn0:
            it, bn = bn[:nb], bn[nb:]
            sg.streams.append(it)
    assert not bn and args.bnk + args.bn0 <= 12

    it = wstage_items(0, 0, 0)
    if args.w0first:
        em.wait_vm(("xc", 0))
    emit_now(em, it[:-1])
    for g in groups[:args.PF]:
        issue_read(em, g)
    emit_now(em, it[-1:])
    if args.stamp:
        em.op("s_memtime s[50:51]")
        em.op("s_memrealtime s[58:59]")

    syncs = [s for s in range(P, 31) if s < args.sy0 or s % 2 == 0]
    nb0 = 16
    for st in range(11, LOOP0 + 6):
        first_ok = min(s for s in syncs if s >= max(st - 7, P))
        Q += xstage(st, nb0 + syncs.index(first_ok) + 1)
        if args.cpf and st == args.cpf2:
            Q += code_prefetch("L_loop", True)
        if args.cpf and st == 13:
            Q += code_prefetch("L_steady+16384", True)
    halves = [(o, h) for o in range(P - 2) for h in range(2)]
    for s in range(P, 32):
        ep = []
        pos[s].nh = 0
        for _ in range(args.hpp):
            if halves:
                o, h = halves.pop(0)
                ep += epilogue_ops(o, args, half=h, at=(args.a_ep if s == P else args.a_h))
                pos[s].nh += 1
        ep += epilogue_ops(s - 2, args, at=args.a_ep)
        sy = []
        if s in syncs:
            later = [x for x in syncs if x > s]
            need = later[0] if later else 31
            site = (s & 3) if s >= LOOP0 else None
            sy.append(F(lambda em, need=need, site=site: em.wait_vm(("x", need), site=site), "o", at=args.a_sync))
            sy.append(F(barrier, "x"))
        if s == 31:
            ep[0].at = 0
            ep += epilogue_ops(30, args, at=39)
        pos[s].streams = [sy, ep]
        if LOOP0 <= s < 31:
            nbar = nb0 + len([x for x in syncs if x <= s])
            pos[s].Q = xstage_loop(s, s + 6, nbar)
    assert not halves

    for kk in range(16):
        nxt = p1[kk + 1].groups if kk < 15 else pos[P].groups
        if args.fine == 1:
            em.op(f"s_memtime s[{68+2*kk}:{69+2*kk}]")
        emit_segment(em, p1[kk], nxt, args.PF, args.cap1, False, Q, args.qsep1)
    if args.fine == 1:
        em.op(f"s_memtime s[100:101]")
    if args.stamp:
        em.op("s_memtime s[52:53]")
        em.op("s_memrealtime s[60:61]")
    em.label("L_steady")
    em.xcost = args.xcost
    for s in range(P, LOOP0):
        if args.fine == 2:
            em.op(f"s_memtime s[{68+2*(s-P)}:{69+2*(s-P)}]")
        emit_segment(em, pos[s], pos[s + 1].groups, args.PF, 3 if pos[s].nh > 1 else args.cap, args.v1, Q, args.qsep, args.qmax0)
    assert not Q, len(Q)
    if args.fine == 2:
        em.op(f"s_memtime s[{68+2*(LOOP0-P)}:{69+2*(LOOP0-P)}]")
    if LOOP0 & 4:
        em.op(f"s_mov_b32 s{sMb}, s{sM0}")
        em.op(f"s_add_u32 s{sMa}, s{sM0}, 0x10000")
        em.op(f"v_swap_b32 v{vXr}, v{vXr2}")
    else:
        em.op(f"s_mov_b32 s{sMa}, s{sM0}")
        em.op(f"s_add_u32 s{sMb}, s{sM0}, 0x10000")
    em.op(f"s_mov_b32 s{sXo}, {(LOOP0+5)*1024}")
    em.op(f"s_mov_b32 s{sOo}, {(LOOP0-3)*1024}")
    em.op(f"s_mov_b32 s{sCnt}, 0")

    def seg(s):
        q = list(pos[s].Q)
        emit_segment(em, pos[s], pos[s + 1].groups, args.PF, args.cap, args.v1, q, args.qsep)
        assert not q

    def flip():
        em.op(f"v_swap_b32 v{vXr}, v{vXr2}")
        em.op(f"s_xor_b32 s{sMa}, s{sMa}, 0x10000")
        em.op(f"s_xor_b32 s{sMb}, s{sMb}, 0x10000")

    em.label("L_loop")
    if linear:
        for s in range(LOOP0, 31):
            em.loop_it = (s - LOOP0) // 4
            seg(s)
            if s % 4 == 3:
                flip()
    else:
        em.loop_it = 0
        lds_entry = list(em.lds)
        for s in range(LOOP0, LOOP0 + 3):
            seg(s)
        em.op(f"s_cmp_eq_u32 s{sCnt}, {(32-LOOP0)//4-1}")
        em.op("s_cbranch_scc1 L_tail")
        saved = (list(em.lds), list(em.vm))
        seg(LOOP0 + 3)
        flip()
        em.op(f"s_add_u32 s{sCnt}, s{sCnt}, 1")
        em.op("s_branch L_loop")
        assert [t[1] - 64 for t in em.lds] == [t[1] for t in lds_entry], (em.lds, lds_entry)
        em.label("L_tail")
        em.lds = [(t[0], t[1] + (28 - LOOP0) * 16) for t in saved[0]]
        em.vm = saved[1]
    em.loop_it = (31 - LOOP0) // 4
    if args.fine == 2:
        em.op(f"s_memtime s[{70+2*(LOOP0-P)}:{71+2*(LOOP0-P)}]")
    tail_segment(em, pos[31], args)
    em.op("s_nop 7")
    for f in epilogue_ops(31, args):
        if f.gapsep:
            em.op("s_nop 1")
        f.fn(em)
    if args.fine == 2:
        em.op(f"s_memtime s[{72+2*(LOOP0-P)}:{73+2*(LOOP0-P)}]")
    if args.extra:
        em.op(f"s_mov_b32 s{sCnt}, 0")
        em.label("L_extra")
        for kk in range(16):
            for t in range(3):
                for db in range(2):
                    a = E[t] + 4 * db
                    em.op(f"v_mfma_f32_16x16x32_bf16 {vr(a)}, {wreg(kk,t,db)}, {vr(XF[kk & 3])}, {vr(a)}")
        em.op(f"s_add_u32 s{sCnt}, s{sCnt}, 1")
        em.op(f"s_cmp_lt_u32 s{sCnt}, {args.extra}")
        em.op("s_cbranch_scc1 L_extra")
    if args.stamp:
        em.op("s_waitcnt vmcnt(0) lgkmcnt(0)")
        em.op("s_memtime s[54:55]")
        em.op("s_memrealtime s[62:63]")
        em.op("s_waitcnt lgkmcnt(0)")
    if args.stamp == 2:
        em.op("s_mov_b64 exec, 1")
        em.op("v_mov_b32 v0, 0")
        em.op("s_not_b32 s3, s56")
        em.op("v_mov_b32 v4, s3")
        em.op("global_atomic_umax v0, v4, s[46:47]")
        em.op("v_mov_b32 v5, s62")
        em.op("global_atomic_umax v0, v5, s[46:47] offset:4")
        em.op("v_mov_b32 v12, s56")
        em.op("global_atomic_umax v0, v12, s[46:47] offset:32")
        for i in range(3):
            em.op(f"s_sub_u32 s3, s{50+2*i}, s{48+2*i}")
            em.op(f"v_mov_b32 v{6+i}, s3")
            em.op(f"global_atomic_umax v0, v{6+i}, s[46:47] offset:{20+4*i}")
            em.op("s_lshr_b32 s3, s3, 4")
            em.op(f"v_mov_b32 v{9+i}, s3")
            em.op(f"global_atomic_add v0, v{9+i}, s[46:47] offset:{8+4*i}")
            em.op(f"s_sub_u32 s3, s{58+2*i}, s{56+2*i}")
            em.op(f"v_mov_b32 v{13+i}, s3")
            em.op(f"global_atomic_add v0, v{13+i}, s[46:47] offset:{36+4*i}")
    elif args.stamp:
        em.op("s_lshl_b32 s3, s2, 3")
        em.op(f"s_add_u32 s3, s3, s{sWave}")
        em.op("s_lshl_b32 s3, s3, 6")
        em.op("v_mov_b32 v0, s3")
        for i in range(16):
            em.op(f"v_mov_b32 v{4+i}, s{48+i}")
        for i in range(4):
            em.op(f"global_store_dwordx4 v0, v[{4+4*i}:{7+4*i}], s[46:47] offset:{16*i}")
        if args.fine:
            em.op("v_add_u32 v0, 0x100000, v0")
            em.op("v_lshlrev_b32 v0, 1, v0")
            for i in range(17):
                em.op(f"v_mov_b32 v{4+i}, s{68+2*i}")
            for i in range(5):
                em.op(f"global_store_dwordx4 v0, v[{4+4*i}:{7+4*i}], s[46:47] offset:{16*i}")
    em.label("L_end")
    em.op("s_endpgm")
    em.label("L_code_end")
    return em


def main():
    ap = argparse.ArgumentParser()
    ap.add_argument("-o", default="standalone__batchnorm__sampling.s")
    ap.add_argument("--PF", type=int, default=3)
    ap.add_argument("--pre", type=int, default=1)
    ap.add_argument("--a_w", type=int, default=24)
    ap.add_argument("--a_done", type=int, default=43)
    ap.add_argument("--a_ep", type=int, default=8)
    ap.add_argument("--a_sync", type=int, default=1)
    ap.add_argument("--cap", type=int, default=2)
    ap.add_argument("--cap1", type=int, default=2)
    ap.add_argument("--qsep1", type=int, default=3)
    ap.add_argument("--qsep", type=int, default=2)
    ap.add_argument("--qmax", type=int, default=4)
    ap.add_argument("--bnk", type=int, default=6)
    ap.add_argument("--sy", type=int, default=2)
    ap.add_argument("--sy0", type=int, default=10)
    ap.add_argument("--v1", type=int, default=1)
    ap.add_argument("--rot", type=int, default=1)
    ap.add_argument("--stmod", type=str, default=" nt")
    ap.add_argument("--cpf", type=int, default=1)
    ap.add_argument("--cpf1", type=int, default=6)
    ap.add_argument("--cpf2", type=int, default=21)
    ap.add_argument("--hpp", type=int, default=1)
    ap.add_argument("--touch", type=int, default=0)
    ap.add_argument("--xlate", type=int, default=1)
    ap.add_argument("--map", type=int, default=0)
    ap.add_argument("--extra", type=int, default=0)
    ap.add_argument("--bnlate", type=int, default=0)
    ap.add_argument("--bn0", type=int, default=1)
    ap.add_argument("--w0first", type=int, default=0)
    ap.add_argument("--xcost", type=int, default=8)
    ap.add_argument("--xcost1", type=int, default=0)
    ap.add_argument("--a_h", type=int, default=0)
    ap.add_argument("--qmax0", type=int, default=6)
    ap.add_argument("--stamp", type=int, default=0)
    ap.add_argument("--fine", type=int, default=0)
    ap.add_argument("--dbg", type=str, default="")
    args = ap.parse_args()
    tr = build(args, linear=True)
    em = build(args, vm_override=tr.vm_sites)
    print("sites", tr.vm_sites, file=sys.stderr)
    out = HEADER
    out += '.amdgcn_target "amdgcn-amd-amdhsa--gfx950"\n.text\n'
    out += f".globl {NAME}\n.p2align 8\n.type {NAME},@function\n{NAME}:\n"
    lines = em.lines
    if args.dbg:
        i0 = min(i for i, l in enumerate(lines) if "v_mfma" in l)
        i1 = max(i for i, l in enumerate(lines) if "v_mfma" in l)
        body = lines[i0:i1]

        def drop(pred):
            nonlocal body
            body = [l for l in body if not pred(l)]
        if "b" in args.dbg: drop(lambda l: "s_barrier" in l)
        if "d" in args.dbg: drop(lambda l: " lds" in l and "buffer_load" in l)
        if "s" in args.dbg: drop(lambda l: "buffer_store" in l)
        if "e" in args.dbg: drop(lambda l: l.strip().startswith(("v_fma", "v_exp", "v_rcp", "v_mul", "v_cvt", "v_perm", "v_lshl", "v_and", "v_add", "v_sqrt")))
        if "T" in args.dbg: drop(lambda l: "_tr_" in l)
        if "v" in args.dbg: drop(lambda l: "vmcnt" in l)
        lines = lines[:i0] + body + lines[i1:]
    out += "\n".join(lines) + "\n"
    out += f""".section .rodata,"a"
.p2align 6
.amdhsa_kernel {NAME}
  .amdhsa_next_free_vgpr 512
  .amdhsa_next_free_sgpr 102
  .amdhsa_accum_offset 256
  .amdhsa_group_segment_fixed_size 0
  .amdhsa_kernarg_size 72
  .amdhsa_user_sgpr_count 2
  .amdhsa_user_sgpr_kernarg_segment_ptr 1
  .amdhsa_system_sgpr_workgroup_id_x 1
.end_amdhsa_kernel
"""
    open(args.o, "w").write(out)
    print("lines", len(em.lines), "dumps", em.dumps, file=sys.stderr)


if __name__ == "__main__":
    main()
```

```python
import sys, argparse
import gen5
from gen5 import *

DOC = """;
"""
B6 = XF + [R[1], R[1] + 4]


class Frag:
    def __init__(self, s, kk, buf, need_bar):
        self.s, self.kk, self.buf, self.need_bar = s, kk, buf, need_bar
        self.first = self.last = None
        self.prev = None


class Seg:
    def __init__(self):
        self.m = []
        self.streams = []
        self.Q = None


def frag_read(em, f):
    if f.s < P:
        a = XSB[(f.kk >> 1) & 3] + f.s * 2048 + (f.kk & 1) * 512
        base = vXp2 if a >= 65536 else vXp
    else:
        a = (f.s & 7) * 16384 + (f.kk >> 2) * 4096 + (f.kk & 3) * 256
        base = vXr2 if a >= 65536 else vXr
        if em.loop_it is not None:
            base = vXr if (f.s - LOOP0) // 4 == em.loop_it else vXr2
    em.ldsop(f"ds_read_b128 {vr(f.buf)}, v{base} offset:{a & 65535}", ("xf", f.id))
    f.issued = True


def emit_seg(em, seg, frags, cap, v1, Q=None, qsep=4, qmax=99):
    streams = [list(s) for s in seg.streams]
    lastgap = [-99] * len(streams)
    n = len(seg.m)
    qn = 0
    for gap, (acc, w, fr, first) in enumerate(seg.m):
        assert fr.issued, (fr.s, fr.kk)
        if fr.first == em.mi:
            em.wait_lds(("xf", fr.id))
        c = "0" if first else vr(acc)
        em.op(f"v_mfma_f32_16x16x32_bf16 {vr(acc)}, {w}, {vr(fr.buf)}, {c}")
        mi = em.mi
        em.mi += 1
        em.gapno += 1
        n_left = cap
        nxt = seg.m[gap + 1][2] if gap + 1 < n else seg.next_frag
        if nxt is not None and nxt.first == em.mi:
            n_left -= 1
        v_left = 8
        final = gap == n - 1
        while em.fnext < len(frags):
            f = frags[em.fnext]
            must = f.first == em.mi
            if (f.prev is None or f.prev.last <= mi) and em.nbar >= f.need_bar and (n_left > 0 or must):
                frag_read(em, f)
                em.fnext += 1
                n_left -= 1
                if not must and em.one_read:
                    break
            else:
                break
        if final:
            n_left = 10**6
            nd = sum(len(st) for st in streams)
            if nd:
                em.dumps.append((fr.s, fr.kk, nd))
        progress = True
        while progress and n_left > 0:
            progress = False
            if Q and Q[0].isload and em.gapno != em.lastm0 and not final and qn < qmax and v_left >= em.xcost:
                f = Q.pop(0)
                f.fn(em)
                em.lastload = em.gapno
                v_left -= em.xcost
                qn += 1
                n_left -= 1
                progress = True
                continue
            for si, st in enumerate(streams):
                if not st or n_left <= 0:
                    continue
                f = st[0]
                if not final:
                    if f.at > gap or gap < lastgap[si] + f.gapsep:
                        continue
                    cost = {"v": 8 if v1 else 4, "t": 8, "o": 0, "x": em.xcost}[f.kind]
                    if cost > v_left:
                        continue
                    v_left -= cost
                else:
                    if f.gapsep or f.kind == "v":
                        em.op("s_nop 1")
                f.fn(em)
                if final and f.kind == "x":
                    em.op("s_nop 1")
                st.pop(0)
                lastgap[si] = gap
                n_left -= 1
                progress = True
            if Q and n_left > 0 and not final and qn < qmax and not Q[0].isload:
                f = Q[0]
                ok = em.nbar >= f.need_bar
                if f.gapsep and em.gapno < em.lastload + qsep:
                    ok = False
                if ok:
                    f.fn(em)
                    Q.pop(0)
                    em.lastm0 = em.gapno
                    n_left -= 1
                    progress = True
    for st in streams:
        assert not st


def build(args, vm_override=None, linear=False):
    em = Em()
    em.vm_override = vm_override
    em.loop_it = None
    em.xcost = args.xcost1
    em.nbar = 0
    em.gapno = 0
    em.lastload = -99
    em.lastm0 = -99
    em.mi = 0
    em.fnext = 0
    em.one_read = True
    prologue(em, args)
    emit_now(em, xchunk(0, range(4)) + wload(0))
    prologue2(em)
    emit_now(em, wload(1))
    bn_loads(em)
    emit_now(em, xchunk(1, range(4)))
    B = lambda k: k + 2
    Q = []
    pre = [wload(2), wload(3)]
    for it in pre[:args.pre]:
        emit_now(em, it)
    for it in pre[args.pre:]:
        Q += it
    for kk in range(12):
        u = kk + 4
        if u % 2 == 0:
            c = u // 2
            Q += xchunk(c, range(4), B(2 * c - 6) if c >= 4 else 0)
        if u == 15:
            Q += xstage(8, B(10))
        Q += wload(u, B(kk))
        if args.cpf and kk == args.cpf1:
            Q += code_prefetch("L_steady", False)
    Q += xstage(9, B(12)) + xstage(10, B(13)) + xstage(11, B(13)) + xstage(12, B(12)) + xstage(13, B(14))

    syncs = [s for s in range(P, 31) if s < args.sy0 or s % 2 == 0]
    nb0 = 16

    frags = []
    fmap = {}
    occupant = {}

    def newfrag(s, kk, buf, need_bar):
        f = Frag(s, kk, buf, need_bar)
        f.id = len(frags)
        f.issued = False
        f.prev = occupant.get(buf)
        occupant[buf] = f
        frags.append(f)
        fmap[(s, kk)] = f
        return f
    n = 0
    for kk in range(16):
        for p in range(P):
            ring = B6 if args.ring6 else XF
            newfrag(p, kk, ring[n % len(ring)], 1 if kk == 0 else B(kk - 1) if kk % 2 == 0 else 0)
            n += 1
    for s in range(P, 31):
        if s == P:
            nb = B(14)
        else:
            cert = max(x for x in syncs if x < s)
            nb = nb0 + syncs.index(cert) + 1
        for kk in range(16):
            newfrag(s, kk, XF[kk & 3], nb)
    cert = max(syncs)
    for kk in range(16):
        newfrag(31, kk, XF[kk] if kk < 4 else E[0] + 4 * (kk - 4), nb0 + syncs.index(cert) + 1)

    started = set()
    cnt = [0]

    def add(seg, o, db, t, s, kk):
        f = fmap[(s, kk)]
        first = (o, db) not in started
        started.add((o, db))
        seg.m.append((accreg(o) + 4 * db, wreg(kk, t, db), f, first))
        if f.first is None:
            f.first = cnt[0]
        f.last = cnt[0]
        cnt[0] += 1

    p1 = []
    for kk in range(16):
        sg = Seg()
        if args.ord1:
            for o in range(P + 1):
                ts = [t for t in range(3) if 0 <= o - 1 + t < P]
                for db in range(2):
                    for t in (ts if db == 0 else ts[::-1]):
                        add(sg, o, db, t, o - 1 + t, kk)
        else:
            for p in range(P):
                for t in range(3):
                    if p + 1 - t >= 0:
                        for db in range(2):
                            add(sg, p + 1 - t, db, t, p, kk)
        p1.append(sg)
    pos = {}
    for s in range(P, 31):
        sg = Seg()
        if args.ord2:
            for k0 in range(0, 16, 2):
                j = 0
                for t in range(3):
                    for db in range(2):
                        for kk in ((k0, k0 + 1) if j % 2 == 0 else (k0 + 1, k0)):
                            add(sg, s + 1 - t, db, t, s, kk)
                        j += 1
        else:
            for kk in range(16):
                for t in range(3):
                    for db in range(2):
                        add(sg, s + 1 - t, db, t, s, kk)
        pos[s] = sg
    sg = Seg()
    for k0 in range(0, 16, 2):
        for db in range(2):
            for kk in ((k0, k0 + 1) if db == 0 else (k0 + 1, k0)):
                add(sg, 30, db, 2, 31, kk)
    for db in range(2):
        for kk in (range(16) if db == 0 else reversed(range(16))):
            add(sg, 31, db, 1, 31, kk)
    pos[31] = sg
    allsegs = p1 + [pos[s] for s in range(P, 32)]
    for a, b in zip(allsegs, allsegs[1:] + [None]):
        a.next_frag = b.m[0][2] if b else None

    bn = bn_compute_items()
    nb = (len(bn) + args.bnk - 1) // args.bnk
    for kk in range(16):
        sg = p1[kk]
        if kk < 15:
            sg.streams.append(wstage_items(kk + 1, args.a_w, args.a_done))
        if args.bn0 <= kk < args.bnk + args.bn0:
            it, bn = bn[:nb], bn[nb:]
            sg.streams.append(it)
    assert not bn

    it = wstage_items(0, 0, 0)
    emit_now(em, it[:-1])
    for f in frags[:(5 if args.ring6 else 3)]:
        frag_read(em, f)
        em.fnext += 1
    emit_now(em, it[-1:])
    if args.stamp:
        em.op("s_memtime s[50:51]")
        em.op("s_memrealtime s[58:59]")

    for st in range(14, LOOP0 + 6):
        first_ok = min(s for s in syncs if s >= max(st - 7, P))
        Q += xstage(st, nb0 + syncs.index(first_ok) + 1)
        if args.cpf and st == args.cpf2:
            Q += code_prefetch("L_loop", True)
        if args.cpf and st == 15:
            Q += code_prefetch("L_steady+16384", True)
    halves = [(o, h) for o in range(P - 2) for h in range(2)]
    for s in range(P, 32):
        ep = []
        if halves:
            o, h = halves.pop(0)
            ep += epilogue_ops(o, args, half=h, at=(args.a_ep if s == P else args.a_h))
        ep += epilogue_ops(s - 2, args, at=args.a_ep)
        sy = []
        if s in syncs:
            later = [x for x in syncs if x > s]
            need = later[0] if later else 31
            site = (s & 3) if s >= LOOP0 else None
            sy.append(F(lambda em, need=need, site=site: em.wait_vm(("x", need), site=site), "o", at=args.a_sync))
            sy.append(F(barrier, "x"))
        if s == 31:
            ep[0].at = args.a_ep
            ep += epilogue_ops(30, args, at=40)
            ep += epilogue_ops(31, args, at=56, half=0)
        pos[s].streams = [sy, ep]
        if LOOP0 <= s < 31:
            pos[s].Q = xstage_loop(s, s + 6, nb0 + len([x for x in syncs if x <= s]))
    assert not halves

    for kk in range(16):
        if args.fine == 1:
            em.op(f"s_memtime s[{68+2*kk}:{69+2*kk}]")
        emit_seg(em, p1[kk], frags, args.cap1, False, Q, args.qsep1 if kk < args.kpost else args.qpost)
    if args.fine == 1:
        em.op(f"s_memtime s[100:101]")
    if args.stamp:
        em.op("s_memtime s[52:53]")
        em.op("s_memrealtime s[60:61]")
    em.label("L_steady")
    em.xcost = args.xcost
    for s in range(P, LOOP0):
        if args.fine == 2:
            em.op(f"s_memtime s[{68+2*(s-P)}:{69+2*(s-P)}]")
        emit_seg(em, pos[s], frags, args.cap, args.v1, Q, args.qsep0, args.qmax0)
    assert not Q, len(Q)
    if args.fine == 2:
        em.op(f"s_memtime s[{68+2*(LOOP0-P)}:{69+2*(LOOP0-P)}]")
    assert LOOP0 & 4
    em.op(f"s_mov_b32 s{sMb}, s{sM0}")
    em.op(f"s_add_u32 s{sMa}, s{sM0}, 0x10000")
    em.op(f"v_swap_b32 v{vXr}, v{vXr2}")
    em.op(f"s_mov_b32 s{sXo}, {(LOOP0+5)*1024}")
    em.op(f"s_mov_b32 s{sOo}, {(LOOP0-3)*1024}")
    em.op(f"s_mov_b32 s{sCnt}, 0")

    n31 = fmap[(31, 0)].id
    loopfr = frags[:n31 + 4]

    def seg(s):
        q = list(pos[s].Q)
        emit_seg(em, pos[s], loopfr, args.cap, args.v1, q, args.qsep)
        assert not q

    def flip():
        em.op(f"v_swap_b32 v{vXr}, v{vXr2}")
        em.op(f"s_xor_b32 s{sMa}, s{sMa}, 0x10000")
        em.op(f"s_xor_b32 s{sMb}, s{sMb}, 0x10000")

    em.label("L_loop")
    if linear:
        for s in range(LOOP0, 31):
            em.loop_it = (s - LOOP0) // 4
            seg(s)
            if s % 4 == 3:
                flip()
    else:
        em.loop_it = 0
        entry = ([t[1] for t in em.lds], em.fnext)
        for s in range(LOOP0, LOOP0 + 3):
            seg(s)
        em.op(f"s_cmp_eq_u32 s{sCnt}, {(32-LOOP0)//4-1}")
        em.op("s_cbranch_scc1 L_tail")
        saved = (list(em.lds), list(em.vm), em.fnext, em.mi, em.nbar)
        seg(LOOP0 + 3)
        flip()
        em.op(f"s_add_u32 s{sCnt}, s{sCnt}, 1")
        em.op("s_branch L_loop")
        assert [t[1] - 64 for t in em.lds] == entry[0] and em.fnext - 64 == entry[1], (em.lds, entry)
        em.label("L_tail")
        d = (28 - LOOP0) * 16
        em.lds = [(t[0], t[1] + d) for t in saved[0]]
        em.vm = saved[1]
        em.fnext = saved[2] + d
        assert n31 < em.fnext <= n31 + 4, (em.fnext, n31)
        em.mi = saved[3] + (28 - LOOP0) * 96
        em.nbar = 10**6
        for f in frags[:em.fnext]:
            f.issued = True
    em.loop_it = (31 - LOOP0) // 4
    if args.fine == 2:
        em.op(f"s_memtime s[{70+2*(LOOP0-P)}:{71+2*(LOOP0-P)}]")
    em.one_read = False
    pos[31].streams = [pos[31].streams[1]]
    tail = pos[31]
    rest = epilogue_ops(31, args, half=1)
    st = tail.streams[0]
    tail.streams = [st]
    emit_tail(em, tail, frags, rest)
    if args.fine == 2:
        em.op(f"s_memtime s[{72+2*(LOOP0-P)}:{73+2*(LOOP0-P)}]")
    finish(em, args)
    return em


def emit_tail(em, seg, frags, rest):
    st = list(seg.streams[0])
    last = -99
    for gap, (acc, w, fr, first) in enumerate(seg.m):
        while em.fnext < len(frags) and (frags[em.fnext].prev is None or frags[em.fnext].prev.last < em.mi) and len(em.lds) < 14:
            frag_read(em, frags[em.fnext])
            em.fnext += 1
        if fr.first == em.mi:
            em.wait_lds(("xf", fr.id))
        em.op(f"v_mfma_f32_16x16x32_bf16 {vr(acc)}, {w}, {vr(fr.buf)}, {vr(acc)}")
        em.mi += 1
        v_left = 8
        while st and st[0].at <= gap and gap >= last + st[0].gapsep:
            cost = {"v": 4, "t": 8, "o": 0, "x": 8}[st[0].kind]
            if cost > v_left:
                break
            v_left -= cost
            st.pop(0).fn(em)
            last = gap
    if st:
        em.dumps.append(("tail", len(st)))
    for f in st:
        if f.gapsep:
            em.op("s_nop 1")
        f.fn(em)
    if len(st) < 8:
        em.op(f"s_nop {7 - len(st)}")
    for f in rest:
        if f.gapsep:
            em.op("s_nop 1")
        f.fn(em)


def finish(em, args):
    if args.stamp:
        em.op("s_waitcnt vmcnt(0) lgkmcnt(0)")
        em.op("s_memtime s[54:55]")
        em.op("s_memrealtime s[62:63]")
        em.op("s_waitcnt lgkmcnt(0)")
        em.op("s_lshl_b32 s3, s2, 3")
        em.op(f"s_add_u32 s3, s3, s{sWave}")
        em.op("s_lshl_b32 s3, s3, 6")
        em.op("v_mov_b32 v0, s3")
        for i in range(16):
            em.op(f"v_mov_b32 v{4+i}, s{48+i}")
        for i in range(4):
            em.op(f"global_store_dwordx4 v0, v[{4+4*i}:{7+4*i}], s[46:47] offset:{16*i}")
        if args.fine:
            em.op("v_add_u32 v0, 0x100000, v0")
            em.op("v_lshlrev_b32 v0, 1, v0")
            for i in range(17):
                em.op(f"v_mov_b32 v{4+i}, s{68+2*i}")
            for i in range(5):
                em.op(f"global_store_dwordx4 v0, v[{4+4*i}:{7+4*i}], s[46:47] offset:{16*i}")
    em.label("L_end")
    em.op("s_endpgm")
    em.label("L_code_end")


def main():
    ap = argparse.ArgumentParser()
    ap.add_argument("-o", default="standalone__batchnorm__sampling.s")
    for k, d in dict(pre=1, a_w=22, a_done=43, a_ep=8, a_sync=1, cap=2, cap1=2, qsep1=3, qsep=2, qsep0=8, qmax0=6, bnk=6, bn0=1, sy0=10, v1=1,
                     rot=1, cpf=1, cpf1=6, cpf2=21, xcost=8, xcost1=0, a_h=0, map=0, stamp=0, fine=0, ord1=1, ord2=1, ring6=0, kpost=12, qpost=9).items():
        ap.add_argument("--" + k, type=int, default=d)
    ap.add_argument("--stmod", type=str, default=" nt")
    args = ap.parse_args()
    tr = build(args, linear=True)
    em = build(args, vm_override=tr.vm_sites)
    out = HEADER
    out += DOC
    out += '.amdgcn_target "amdgcn-amd-amdhsa--gfx950"\n.text\n'
    out += f".globl {NAME}\n.p2align 8\n.type {NAME},@function\n{NAME}:\n"
    out += "\n".join(em.lines) + "\n"
    out += f""".section .rodata,"a"
.p2align 6
.amdhsa_kernel {NAME}
  .amdhsa_next_free_vgpr 512
  .amdhsa_next_free_sgpr 102
  .amdhsa_accum_offset 256
  .amdhsa_group_segment_fixed_size 0
  .amdhsa_kernarg_size 72
  .amdhsa_user_sgpr_count 2
  .amdhsa_user_sgpr_kernarg_segment_ptr 1
  .amdhsa_system_sgpr_workgroup_id_x 1
.end_amdhsa_kernel
"""
    open(args.o, "w").write(out)
    print("sites", tr.vm_sites, "lines", len(em.lines), "dumps", em.dumps, file=sys.stderr)


if __name__ == "__main__":
    main()
```

```python
import sys, argparse
import gen5
from gen5 import *

DOC = """;
"""
B6 = XF + [R[1], R[1] + 4]


class Frag:
    def __init__(self, s, kk, buf, need_bar):
        self.s, self.kk, self.buf, self.need_bar = s, kk, buf, need_bar
        self.first = self.last = None
        self.prev = None


class Seg:
    def __init__(self):
        self.m = []
        self.streams = []
        self.Q = None


def frag_read(em, f):
    if f.s < P:
        a = XSB[(f.kk >> 1) & 3] + f.s * 2048 + (f.kk & 1) * 512
        base = vXp2 if a >= 65536 else vXp
    else:
        a = (f.s & 7) * 16384 + (f.kk >> 2) * 4096 + (f.kk & 3) * 256
        base = vXr2 if a >= 65536 else vXr
        if em.loop_it is not None:
            base = vXr if (f.s - LOOP0) // 4 == em.loop_it else vXr2
    em.ldsop(f"ds_read_b128 {vr(f.buf)}, v{base} offset:{a & 65535}", ("xf", f.id))
    f.issued = True


def emit_seg(em, seg, frags, cap, v1, Q=None, qsep=4, qmax=99):
    streams = [list(s) for s in seg.streams]
    lastgap = [-99] * len(streams)
    n = len(seg.m)
    qn = 0
    for gap, (acc, w, fr, first) in enumerate(seg.m):
        assert fr.issued, (fr.s, fr.kk)
        if fr.first == em.mi:
            em.wait_lds(("xf", fr.id))
        c = "0" if first else vr(acc)
        em.op(f"v_mfma_f32_16x16x32_bf16 {vr(acc)}, {w}, {vr(fr.buf)}, {c}")
        mi = em.mi
        em.mi += 1
        em.gapno += 1
        n_left = cap
        nxt = seg.m[gap + 1][2] if gap + 1 < n else seg.next_frag
        if nxt is not None and nxt.first == em.mi:
            n_left -= 1
        v_left = 8
        final = gap == n - 1
        while em.fnext < len(frags):
            f = frags[em.fnext]
            must = f.first == em.mi
            if (f.prev is None or f.prev.last <= mi) and em.nbar >= f.need_bar and (n_left > 0 or must):
                frag_read(em, f)
                em.fnext += 1
                n_left -= 1
                if not must and em.one_read:
                    break
            else:
                break
        if final:
            n_left = 10**6
            nd = sum(len(st) for st in streams)
            if nd:
                em.dumps.append((fr.s, fr.kk, nd))
        progress = True
        while progress and n_left > 0:
            progress = False
            if Q and Q[0].isload and em.gapno != em.lastm0 and not final and qn < qmax and v_left >= em.xcost:
                f = Q.pop(0)
                f.fn(em)
                em.lastload = em.gapno
                v_left -= em.xcost
                qn += 1
                n_left -= 1
                progress = True
                continue
            for si, st in enumerate(streams):
                if not st or n_left <= 0:
                    continue
                f = st[0]
                if not final:
                    if f.at > gap or gap < lastgap[si] + f.gapsep:
                        continue
                    cost = {"v": 8 if v1 else 4, "t": 8, "o": 0, "x": em.xcost}[f.kind]
                    if cost > v_left:
                        continue
                    v_left -= cost
                else:
                    if f.gapsep or f.kind == "v":
                        em.op("s_nop 1")
                f.fn(em)
                if final and f.kind == "x":
                    em.op("s_nop 1")
                st.pop(0)
                lastgap[si] = gap
                n_left -= 1
                progress = True
            if Q and n_left > 0 and not final and qn < qmax and not Q[0].isload:
                f = Q[0]
                ok = em.nbar >= f.need_bar
                if f.gapsep and em.gapno < em.lastload + qsep:
                    ok = False
                if ok:
                    f.fn(em)
                    Q.pop(0)
                    em.lastm0 = em.gapno
                    n_left -= 1
                    progress = True
    for st in streams:
        assert not st


vTw, vTx = 246, 247


def touch_setup(em):
    em.op("v_mul_u32_u24 v20, 43, v11")
    em.op("v_lshrrev_b32 v20, 8, v20")
    em.op("v_mul_u32_u24 v21, 6, v20")
    em.op("v_sub_u32 v21, v11, v21")
    em.op("v_lshrrev_b32 v22, 1, v21")
    em.op("v_lshlrev_b32 v22, 19, v22")
    em.op("v_lshl_add_u32 v22, v20, 15, v22")
    em.op("v_and_b32 v21, 1, v11")
    em.op("v_lshlrev_b32 v21, 7, v21")
    em.op("v_add_u32 v22, v22, v21")
    em.op("s_lshr_b32 s4, s2, 5")
    em.op("s_lshl_b32 s4, s4, 2")
    em.op(f"s_add_u32 s4, s4, s{sWave}")
    em.op("s_lshl_b32 s4, s4, 10")
    em.op("v_add_u32 v22, s4, v22")
    em.op("v_mov_b32 v20, 0x200000")
    em.op("v_cmp_gt_u32 vcc, 24, v11")
    em.op("s_lshr_b32 s4, s5, 6")
    em.op(f"s_add_u32 s4, s4, s{sWave}")
    em.op(f"v_cndmask_b32 v{vTw}, v20, v22, vcc")
    em.op("s_lshl_b32 s4, s4, 15")
    em.op("v_lshrrev_b32 v22, 1, v11")
    em.op("v_lshl_add_u32 v22, v22, 10, v21")
    em.op("v_add_u32 v22, s4, v22")
    em.op("v_cmp_gt_u32 vcc, 16, v11")
    em.op("s_nop 1")
    em.op(f"v_cndmask_b32 v{vTx}, v20, v22, vcc")


def touch_w(b):
    return [F(lambda em: None, "o", gapsep=1),
            F(lambda em: em.vmop(f"buffer_load_dword v253, v{vTw}, s[{sW}:{sW+3}], s{sWc[b]} offen", "touch"), "o", isload=True)]


def touch_x(b):
    return [F(lambda em: em.op(f"s_lshr_b32 s{sTmp2}, s{sWc[b]}, 9"), "o", gapsep=1),
            F(lambda em: em.vmop(f"buffer_load_dword v252, v{vTx}, s[{sX}:{sX+3}], s{sTmp2} offen", "touch"), "o", isload=True)]


def build(args, vm_override=None, linear=False):
    em = Em()
    em.vm_override = vm_override
    em.loop_it = None
    em.xcost = args.xcost1
    em.nbar = 0
    em.gapno = 0
    em.lastload = -99
    em.lastm0 = -99
    em.mi = 0
    em.fnext = 0
    em.one_read = True
    prologue(em, args)
    if args.fine == 3:
        em.op("s_memtime s[68:69]")
    emit_now(em, xchunk(0, range(4)) + wload(0))
    if args.fine == 3:
        em.op("s_memtime s[70:71]")
    B = lambda k: k + 2
    Q = []
    if args.touch:
        touch_setup(em)
        emit_now(em, touch_w(0) + touch_x(0) + touch_w(1) + touch_x(1))
        bn_first = True
        prologue2(em)
        bn_loads(em)
        pre = [wload(1), xchunk(1, range(4)), wload(2), wload(3)]
        for it in pre[:args.pre]:
            emit_now(em, it)
        for it in pre[args.pre:]:
            Q += it
        Q += touch_w(2) + touch_x(2)
    else:
        prologue2(em)
        emit_now(em, wload(1))
        bn_loads(em)
        emit_now(em, xchunk(1, range(4)))
        pre = [wload(2), wload(3)]
        for it in pre[:args.pre]:
            emit_now(em, it)
        for it in pre[args.pre:]:
            Q += it
    for kk in range(12):
        u = kk + 4
        if u % 2 == 0:
            c = u // 2
            Q += xchunk(c, range(4), B(2 * c - 6) if c >= 4 else 0)
        if u == 15:
            Q += xstage(8, B(10))
        Q += wload(u, B(kk))
        if args.touch and kk == args.tk3:
            Q += touch_w(3) + touch_x(3)
        if args.cpf and kk == args.cpf1:
            Q += code_prefetch("L_steady", False)
    Q += xstage(9, B(12)) + xstage(10, B(13)) + xstage(11, B(13)) + xstage(12, B(12)) + xstage(13, B(14))

    syncs = [s for s in range(P, 31) if s < args.sy0 or s % 2 == 0]
    nb0 = 16

    frags = []
    fmap = {}
    occupant = {}

    def newfrag(s, kk, buf, need_bar):
        f = Frag(s, kk, buf, need_bar)
        f.id = len(frags)
        f.issued = False
        f.prev = occupant.get(buf)
        occupant[buf] = f
        frags.append(f)
        fmap[(s, kk)] = f
        return f
    n = 0
    for kk in range(16):
        for p in range(P):
            ring = B6 if args.ring6 else XF
            newfrag(p, kk, ring[n % len(ring)], 1 if kk == 0 else B(kk - 1) if kk % 2 == 0 else 0)
            n += 1
    for s in range(P, 31):
        if s == P:
            nb = B(14)
        else:
            cert = max(x for x in syncs if x < s)
            nb = nb0 + syncs.index(cert) + 1
        for kk in range(16):
            newfrag(s, kk, XF[kk & 3], nb)
    cert = max(syncs)
    for kk in range(16):
        newfrag(31, kk, XF[kk] if kk < 4 else E[0] + 4 * (kk - 4), nb0 + syncs.index(cert) + 1)

    started = set()
    cnt = [0]

    def add(seg, o, db, t, s, kk):
        f = fmap[(s, kk)]
        first = (o, db) not in started
        started.add((o, db))
        seg.m.append((accreg(o) + 4 * db, wreg(kk, t, db), f, first))
        if f.first is None:
            f.first = cnt[0]
        f.last = cnt[0]
        cnt[0] += 1

    p1 = []
    for kk in range(16):
        sg = Seg()
        if args.ord1:
            for o in range(P + 1):
                ts = [t for t in range(3) if 0 <= o - 1 + t < P]
                for db in range(2):
                    for t in (ts if db == 0 else ts[::-1]):
                        add(sg, o, db, t, o - 1 + t, kk)
        else:
            for p in range(P):
                for t in range(3):
                    if p + 1 - t >= 0:
                        for db in range(2):
                            add(sg, p + 1 - t, db, t, p, kk)
        p1.append(sg)
    pos = {}
    for s in range(P, 31):
        sg = Seg()
        if args.ord2:
            for k0 in range(0, 16, 2):
                j = 0
                for t in range(3):
                    for db in range(2):
                        for kk in ((k0, k0 + 1) if j % 2 == 0 else (k0 + 1, k0)):
                            add(sg, s + 1 - t, db, t, s, kk)
                        j += 1
        else:
            for kk in range(16):
                for t in range(3):
                    for db in range(2):
                        add(sg, s + 1 - t, db, t, s, kk)
        pos[s] = sg
    sg = Seg()
    for k0 in range(0, 16, 2):
        for db in range(2):
            for kk in ((k0, k0 + 1) if db == 0 else (k0 + 1, k0)):
                add(sg, 30, db, 2, 31, kk)
    for db in range(2):
        for kk in (range(16) if db == 0 else reversed(range(16))):
            add(sg, 31, db, 1, 31, kk)
    pos[31] = sg
    allsegs = p1 + [pos[s] for s in range(P, 32)]
    for a, b in zip(allsegs, allsegs[1:] + [None]):
        a.next_frag = b.m[0][2] if b else None

    bn = bn_compute_items()
    nb = (len(bn) + args.bnk - 1) // args.bnk
    for kk in range(16):
        sg = p1[kk]
        if kk < 15:
            sg.streams.append(wstage_items(kk + 1, args.a_w, args.a_done))
        if args.bn0 <= kk < args.bnk + args.bn0:
            it, bn = bn[:nb], bn[nb:]
            sg.streams.append(it)
    assert not bn and args.bn0 + args.bnk <= 12

    it = wstage_items(0, 0, 0)
    if args.fine == 3:
        em.op("s_memtime s[72:73]")
        em.wait_vm("cpf")
        em.op("s_memtime s[74:75]")
        em.wait_vm(("xc", 0))
        em.op("s_memtime s[76:77]")
        it[0].fn(em)
        em.op("s_memtime s[78:79]")
        it[1].fn(em)
        em.op("s_memtime s[80:81]")
        it = it[2:]
    emit_now(em, it[:-1])
    for f in frags[:(5 if args.ring6 else 3)]:
        frag_read(em, f)
        em.fnext += 1
    emit_now(em, it[-1:])
    if args.stamp:
        em.op("s_memtime s[50:51]")
        em.op("s_memrealtime s[58:59]")
    if args.fine == 3:
        em.op("s_memtime s[82:83]")

    for st in range(14, LOOP0 + 6):
        first_ok = min(s for s in syncs if s >= max(st - 7, P))
        Q += xstage(st, nb0 + syncs.index(first_ok) + 1)
        if args.cpf and st == args.cpf2:
            Q += code_prefetch("L_loop", True)
        if args.cpf and st == 15:
            Q += code_prefetch("L_steady+16384", True)
    halves = [(o, h) for o in range(P - 2) for h in range(2)]
    for s in range(P, 32):
        ep = []
        if halves:
            o, h = halves.pop(0)
            ep += epilogue_ops(o, args, half=h, at=(args.a_ep if s == P else args.a_h))
        ep += epilogue_ops(s - 2, args, at=args.a_ep)
        sy = []
        if s in syncs:
            later = [x for x in syncs if x > s]
            need = later[0] if later else 31
            site = (s & 3) if s >= LOOP0 else None
            sy.append(F(lambda em, need=need, site=site: em.wait_vm(("x", need), site=site), "o", at=args.a_sync))
            sy.append(F(barrier, "x"))
        if s == 31:
            ep[0].at = args.a_ep
            ep += epilogue_ops(30, args, at=40)
            ep += epilogue_ops(31, args, at=56, half=0)
        pos[s].streams = [sy, ep]
        if LOOP0 <= s < 31:
            pos[s].Q = xstage_loop(s, s + 6, nb0 + len([x for x in syncs if x <= s]))
    assert not halves

    for kk in range(16):
        if args.fine == 1:
            em.op(f"s_memtime s[{68+2*kk}:{69+2*kk}]")
        emit_seg(em, p1[kk], frags, args.cap1, False, Q, args.qsep1 if kk < args.kpost else args.qpost)
    if args.fine == 1:
        em.op(f"s_memtime s[100:101]")
    if args.stamp:
        em.op("s_memtime s[52:53]")
        em.op("s_memrealtime s[60:61]")
    em.label("L_steady")
    em.xcost = args.xcost
    for s in range(P, LOOP0):
        if args.fine == 2:
            em.op(f"s_memtime s[{68+2*(s-P)}:{69+2*(s-P)}]")
        emit_seg(em, pos[s], frags, args.cap, args.v1, Q, args.qsep0, args.qmax0)
    assert not Q, len(Q)
    if args.fine == 2:
        em.op(f"s_memtime s[{68+2*(LOOP0-P)}:{69+2*(LOOP0-P)}]")
    assert LOOP0 & 4
    em.op(f"s_mov_b32 s{sMb}, s{sM0}")
    em.op(f"s_add_u32 s{sMa}, s{sM0}, 0x10000")
    em.op(f"v_swap_b32 v{vXr}, v{vXr2}")
    em.op(f"s_mov_b32 s{sXo}, {(LOOP0+5)*1024}")
    em.op(f"s_mov_b32 s{sOo}, {(LOOP0-3)*1024}")
    em.op(f"s_mov_b32 s{sCnt}, 0")

    n31 = fmap[(31, 0)].id
    loopfr = frags[:n31 + 4]

    def seg(s):
        q = list(pos[s].Q)
        emit_seg(em, pos[s], loopfr, args.cap, args.v1, q, args.qsep)
        assert not q

    def flip():
        em.op(f"v_swap_b32 v{vXr}, v{vXr2}")
        em.op(f"s_xor_b32 s{sMa}, s{sMa}, 0x10000")
        em.op(f"s_xor_b32 s{sMb}, s{sMb}, 0x10000")

    em.label("L_loop")
    if linear:
        for s in range(LOOP0, 31):
            em.loop_it = (s - LOOP0) // 4
            seg(s)
            if s % 4 == 3:
                flip()
    else:
        em.loop_it = 0
        entry = ([t[1] for t in em.lds], em.fnext)
        for s in range(LOOP0, LOOP0 + 3):
            seg(s)
        em.op(f"s_cmp_eq_u32 s{sCnt}, {(32-LOOP0)//4-1}")
        em.op("s_cbranch_scc1 L_tail")
        saved = (list(em.lds), list(em.vm), em.fnext, em.mi, em.nbar)
        seg(LOOP0 + 3)
        flip()
        em.op(f"s_add_u32 s{sCnt}, s{sCnt}, 1")
        em.op("s_branch L_loop")
        assert [t[1] - 64 for t in em.lds] == entry[0] and em.fnext - 64 == entry[1], (em.lds, entry)
        em.label("L_tail")
        d = (28 - LOOP0) * 16
        em.lds = [(t[0], t[1] + d) for t in saved[0]]
        em.vm = saved[1]
        em.fnext = saved[2] + d
        assert n31 < em.fnext <= n31 + 4, (em.fnext, n31)
        em.mi = saved[3] + (28 - LOOP0) * 96
        em.nbar = 10**6
        for f in frags[:em.fnext]:
            f.issued = True
    em.loop_it = (31 - LOOP0) // 4
    if args.fine == 2:
        em.op(f"s_memtime s[{70+2*(LOOP0-P)}:{71+2*(LOOP0-P)}]")
    em.one_read = False
    pos[31].streams = [pos[31].streams[1]]
    tail = pos[31]
    rest = epilogue_ops(31, args, half=1)
    st = tail.streams[0]
    tail.streams = [st]
    emit_tail(em, tail, frags, rest)
    if args.fine == 2:
        em.op(f"s_memtime s[{72+2*(LOOP0-P)}:{73+2*(LOOP0-P)}]")
    finish(em, args)
    return em


def emit_tail(em, seg, frags, rest):
    st = list(seg.streams[0])
    last = -99
    for gap, (acc, w, fr, first) in enumerate(seg.m):
        while em.fnext < len(frags) and (frags[em.fnext].prev is None or frags[em.fnext].prev.last < em.mi) and len(em.lds) < 14:
            frag_read(em, frags[em.fnext])
            em.fnext += 1
        if fr.first == em.mi:
            em.wait_lds(("xf", fr.id))
        em.op(f"v_mfma_f32_16x16x32_bf16 {vr(acc)}, {w}, {vr(fr.buf)}, {vr(acc)}")
        em.mi += 1
        v_left = 8
        while st and st[0].at <= gap and gap >= last + st[0].gapsep:
            cost = {"v": 4, "t": 8, "o": 0, "x": 8}[st[0].kind]
            if cost > v_left:
                break
            v_left -= cost
            st.pop(0).fn(em)
            last = gap
    if st:
        em.dumps.append(("tail", len(st)))
    for f in st:
        if f.gapsep:
            em.op("s_nop 1")
        f.fn(em)
    if len(st) < 8:
        em.op(f"s_nop {7 - len(st)}")
    for f in rest:
        if f.gapsep:
            em.op("s_nop 1")
        f.fn(em)


def finish(em, args):
    if args.stamp:
        em.op("s_waitcnt vmcnt(0) lgkmcnt(0)")
        em.op("s_memtime s[54:55]")
        em.op("s_memrealtime s[62:63]")
        em.op("s_waitcnt lgkmcnt(0)")
        em.op("s_lshl_b32 s3, s2, 3")
        em.op(f"s_add_u32 s3, s3, s{sWave}")
        em.op("s_lshl_b32 s3, s3, 6")
        em.op("v_mov_b32 v0, s3")
        for i in range(16):
            em.op(f"v_mov_b32 v{4+i}, s{48+i}")
        for i in range(4):
            em.op(f"global_store_dwordx4 v0, v[{4+4*i}:{7+4*i}], s[46:47] offset:{16*i}")
        if args.fine:
            em.op("v_add_u32 v0, 0x100000, v0")
            em.op("v_lshlrev_b32 v0, 1, v0")
            if args.fine == 3:
                em.op("s_mov_b32 s66, s48")
            for i in range(17):
                em.op(f"v_mov_b32 v{4+i}, s{(66 if args.fine == 3 else 68)+2*i}")
            for i in range(5):
                em.op(f"global_store_dwordx4 v0, v[{4+4*i}:{7+4*i}], s[46:47] offset:{16*i}")
    em.label("L_end")
    em.op("s_endpgm")
    em.label("L_code_end")


def main():
    ap = argparse.ArgumentParser()
    ap.add_argument("-o", default="standalone__batchnorm__sampling.s")
    for k, d in dict(pre=1, a_w=22, a_done=43, a_ep=8, a_sync=1, cap=2, cap1=2, qsep1=3, qsep=2, qsep0=8, qmax0=6, bnk=6, bn0=1, sy0=10, v1=1,
                     rot=1, cpf=1, cpf1=6, cpf2=21, xcost=8, xcost1=0, a_h=0, map=0, stamp=0, fine=0, ord1=1, ord2=1, ring6=0, kpost=12, qpost=9, touch=0, tk3=3).items():
        ap.add_argument("--" + k, type=int, default=d)
    ap.add_argument("--stmod", type=str, default=" nt")
    args = ap.parse_args()
    tr = build(args, linear=True)
    em = build(args, vm_override=tr.vm_sites)
    out = HEADER
    out += DOC
    out += '.amdgcn_target "amdgcn-amd-amdhsa--gfx950"\n.text\n'
    out += f".globl {NAME}\n.p2align 8\n.type {NAME},@function\n{NAME}:\n"
    out += "\n".join(em.lines) + "\n"
    out += f""".section .rodata,"a"
.p2align 6
.amdhsa_kernel {NAME}
  .amdhsa_next_free_vgpr 512
  .amdhsa_next_free_sgpr 102
  .amdhsa_accum_offset 256
  .amdhsa_group_segment_fixed_size 0
  .amdhsa_kernarg_size 72
  .amdhsa_user_sgpr_count 2
  .amdhsa_user_sgpr_kernarg_segment_ptr 1
  .amdhsa_system_sgpr_workgroup_id_x 1
.end_amdhsa_kernel
"""
    open(args.o, "w").write(out)
    print("sites", tr.vm_sites, "lines", len(em.lines), "dumps", em.dumps, file=sys.stderr)


if __name__ == "__main__":
    main()
```
